```python
import torch

def _softmax(x, axis=-1):
    return torch.softmax(x, dim=axis)
def _gelu(x):
    return torch.nn.functional.gelu(x, approximate="tanh")
def _silu(x):
    return torch.nn.functional.silu(x)
def _sigmoid(x):
    return torch.sigmoid(x)
def _layernorm(x, axis=-1, eps=1e-5):
    m = x.mean(dim=axis, keepdim=True)
    v = x.var(dim=axis, keepdim=True, unbiased=False)
    return (x - m) / torch.sqrt(v + eps)
def _scatter_add(tgt, idx, src, axis=0):
    return tgt.clone().index_add_(axis, idx, src)
def _segment_sum(src, seg, n):
    out = torch.zeros((n,) + src.shape[1:], dtype=src.dtype)
    return out.index_add_(0, seg, src)
def _pad(x, pw):
    flat = tuple(v for pair in reversed(pw) for v in pair)
    return torch.nn.functional.pad(x, flat)

kernel_name = 'recurrent_scan__spectral_fnet__dense_activation_relu__prompt'

def setup_inputs():

    _w = (lambda a: (lambda t: t.to(torch.bfloat16) if t.is_floating_point() else t)(torch.as_tensor(a)))
    def _A_setup():
        B, S, D = 1, 2048, 448
        ns = torch.arange(S)[:, None] * torch.arange(S)[None, :]
        nd = torch.arange(D)[:, None] * torch.arange(D)[None, :]
        Ws_re = torch.cos(-2.0 * torch.pi * ns / S).to(float)
        Ws_im = torch.sin(-2.0 * torch.pi * ns / S).to(float)
        Wd_re = torch.cos(-2.0 * torch.pi * nd / D).to(float)
        Wd_im = torch.sin(-2.0 * torch.pi * nd / D).to(float)
        return {
            "x": _w((lambda *s: torch.randn(*s, dtype=torch.bfloat16) * 0.05)(B, S, D)),
            "dft_seq_re": _w(Ws_re),
            "dft_seq_im": _w(Ws_im),
            "dft_hid_re": _w(Wd_re),
            "dft_hid_im": _w(Wd_im),
        }
    _A_in = _A_setup()

    def _B_setup():
        B, S, D, Dff = 1, 2048, 448, 1792
        return {
            "x": _w((lambda *s: torch.randn(*s, dtype=torch.bfloat16) * 0.05)(B, S, D)),
            "w1": _w((lambda *s: torch.randn(*s, dtype=torch.bfloat16) * 0.05)(D, Dff)),
            "w2": _w((lambda *s: torch.randn(*s, dtype=torch.bfloat16) * 0.05)(Dff, D)),
        }
    _B_in = _B_setup()

    return {
        "A_x": _A_in["x"],
        "A_dft_seq_re": _A_in["dft_seq_re"],
        "A_dft_seq_im": _A_in["dft_seq_im"],
        "A_dft_hid_re": _A_in["dft_hid_re"],
        "A_dft_hid_im": _A_in["dft_hid_im"],
        "B_x": _B_in["x"],
        "B_w1": _B_in["w1"],
        "B_w2": _B_in["w2"],
    }

def reference(A_x, A_dft_seq_re, A_dft_seq_im, A_dft_hid_re, A_dft_hid_im, B_x, B_w1, B_w2):
    def _A_ref(x, dft_seq_re, dft_seq_im, dft_hid_re, dft_hid_im):
        a = torch.einsum("bsd,ed->bse", x, dft_hid_re)
        b = torch.einsum("bsd,ed->bse", x, dft_hid_im)
        y = torch.einsum("ts,bse->bte", dft_seq_re, a) - torch.einsum("ts,bse->bte", dft_seq_im, b)
        return y

    def _B_ref(x, w1, w2):
        h = torch.einsum("bsd,df->bsf", x, w1)
        zero = torch.zeros_like(h)
        h = torch.maximum(h, zero)
        return torch.einsum("bsf,fd->bsd", h, w2)

    x = A_x
    xn = _layernorm(x, axis=-1)
    s = _A_ref(xn, A_dft_seq_re, A_dft_seq_im, A_dft_hid_re, A_dft_hid_im)
    g = _silu(_B_ref(xn, B_w1, B_w2))
    return x + s * g
```

```python
NAME = "recurrent_scan__spectral_fnet__dense_activation_relu__prompt"

class Asm:
    def __init__(self, tracker=None):
        self.lines = []; self.tr = tracker
    def __call__(self, s):
        for l in s.strip("\n").split("\n"):
            self.lines.append("    " + l.strip())
            if self.tr: self.tr.feed(l)
    def label(self, n):
        self.lines.append(n + ":")
    def raw(self, s):
        self.lines.append(s)
    def text(self):
        return "\n".join(self.lines) + "\n"

def kernel_begin(a, name):
    a.raw(f".globl {name}")
    a.raw(".p2align 8")
    a.raw(f".type {name},@function")
    a.raw(f"{name}:")

def descriptor(name, vgpr, sgpr, accum):
    return f""".amdhsa_kernel {name}
  .amdhsa_next_free_vgpr {vgpr}
  .amdhsa_next_free_sgpr {sgpr}
  .amdhsa_accum_offset {accum}
  .amdhsa_group_segment_fixed_size 0
  .amdhsa_kernarg_size 88
  .amdhsa_user_sgpr_count 2
  .amdhsa_user_sgpr_kernarg_segment_ptr 1
  .amdhsa_system_sgpr_workgroup_id_x 1
  .amdhsa_float_denorm_mode_32 3
.end_amdhsa_kernel
"""

def srd(a, dst, base, nbytes):
    a(f"s_mov_b32 s{dst}, s{base}")
    a(f"s_and_b32 s{dst+1}, s{base+1}, 0xffff")
    a(f"s_mov_b32 s{dst+2}, {nbytes}")
    a(f"s_mov_b32 s{dst+3}, 0x00020000")

def file_text(launch_lines, body, descs):
    t = "".join(f"; @launch {l}\n" for l in launch_lines)
    t += '.amdgcn_target "amdgcn-amd-amdhsa--gfx950"\n.text\n'
    t += body
    t += '.section .rodata,"a"\n'
    for d in descs:
        t += ".p2align 6\n" + d
    return t
```

```python
import re, sys

TRANS = ("v_exp_f32", "v_log_f32", "v_rcp_f32", "v_rsq_f32", "v_sqrt_f32", "v_sin_f32", "v_cos_f32")

def regs(tok):
    tok = tok.strip().lstrip("-")
    tok = re.sub(r"^abs\((.*)\)$", r"\1", tok)
    m = re.fullmatch(r"([vsa])\[(\d+):(\d+)\]", tok)
    if m: return [f"{m.group(1)}{i}" for i in range(int(m.group(2)), int(m.group(3)) + 1)]
    m = re.fullmatch(r"([vsa])(\d+)", tok)
    if m: return [tok]
    if tok in ("vcc", "vcc_lo", "vcc_hi"): return ["vcc"]
    if tok in ("exec_lo", "exec_hi"): return ["exec"]
    if tok in ("exec", "m0"): return [tok]
    return []

class Ins:
    def __init__(self, text, ln):
        self.text = text; self.ln = ln
        p = text.split(None, 1)
        self.op = p[0]
        rest = p[1] if len(p) > 1 else ""
        ops = [o.strip() for o in re.split(r",(?![^\[]*\])", rest)]
        last = ops[-1].split()
        self.mods = last[1:] if last else []
        if last: ops[-1] = last[0]
        self.ops = ops
        self.w = set(); self.r = set(); self.A = self.B = self.C = self.D = []
        op = self.op
        self.states = 1
        self.kind = "other"
        R = lambda i: regs(ops[i]) if i < len(ops) else []
        if op == "s_nop": self.states = int(ops[0], 0) + 1
        elif op.startswith("v_mfma"):
            self.kind = "mfma"; self.D, self.A, self.B, self.C = R(0), R(1), R(2), R(3)
            self.w = set(self.D); self.r = set(self.A + self.B + self.C)
            self.passes = 8 if "32x32" in op else 4
        elif op.startswith("v_"):
            self.kind = "valu"
            self.w = set(R(0))
            for i in range(1, len(ops)): self.r |= set(R(i))
            if op.startswith(("v_fmac", "v_dot2c")): self.r |= set(R(0))
            if op.startswith("v_permlane"): self.w |= set(R(1)); self.r |= set(R(0))
            if op.startswith(("v_add_co", "v_sub_co", "v_addc_co")): self.w |= set(R(1)); self.r -= set(R(1)) if not op.startswith("v_addc") else set()
            self.dpp = "dpp" in op or any(m.startswith(("quad_perm", "row_")) for m in self.mods)
        elif op.startswith(("buffer_", "global_")):
            self.kind = "vmem"
            self.lds = "lds" in self.mods or "_lds_" in op
            if "load" in op and not self.lds:
                self.w = set(R(0))
                for i in range(1, len(ops)): self.r |= set(R(i))
            else:
                for i in range(len(ops)): self.r |= set(R(i))
                if "atomic" in op and "sc0" in self.mods: self.w = set(R(0))
            self.data = set()
            if "store" in op and op.endswith(("x3", "x4")):
                self.data = set(R(0)) if op.startswith("buffer") else set(R(1))
            if self.lds: self.r.add("m0")
        elif op.startswith("ds_"):
            self.kind = "ds"
            if "read" in op or "permute" in op or "swizzle" in op:
                self.w = set(R(0))
                for i in range(1, len(ops)): self.r |= set(R(i))
            else:
                for i in range(len(ops)): self.r |= set(R(i))
        elif op.startswith("s_"):
            self.kind = "salu"
            if not op.startswith(("s_cmp", "s_bitcmp", "s_cbranch", "s_branch", "s_waitcnt", "s_barrier", "s_endpgm", "s_setprio", "s_sleep")):
                self.w = set(R(0))
                for i in range(1, len(ops)): self.r |= set(R(i))

def need(p, c):
    n = 0; why = None
    def upd(k, w):
        nonlocal n, why
        if k > n: n = k; why = w
    vw = {x for x in p.w if x[0] in "va" and x != "vcc"}
    sw = {x for x in p.w if x not in vw}
    if p.kind == "valu":
        if c.kind == "mfma" and vw & c.r: upd(2, "valu->mfma")
        if c.kind == "vmem" and sw & c.r: upd(5, "valu sgpr->vmem")
        if c.kind == "valu" and sw & c.r: upd(2, "valu sgpr->valu")
        if c.op.startswith(("v_readfirstlane", "v_readlane")) and vw & c.r: upd(1, "valu->readlane")
        if p.op.replace("_e32", "").replace("_e64", "") in TRANS and c.kind in ("valu",) and vw & c.r: upd(1, "trans->valu")
        if c.kind == "valu" and c.dpp and vw & c.r: upd(2, "valu->dpp")
        if c.op.startswith("v_permlane") and vw & (c.r | c.w): upd(2, "valu->permlane")
        if p.op.startswith("v_dot"):
            if c.op == p.op:
                ab = set(regs(c.ops[1]) + regs(c.ops[2]))
                if vw & ab: upd(3, "dot->dot AB")
            elif vw & (c.r | c.w) and c.kind in ("valu", "vmem", "ds", "mfma"): upd(3, "dot->other")
    if p.kind == "mfma":
        big = {4: 8, 8: 12}[p.passes]; ov = {4: 6, 8: 10}[p.passes]; war = {4: 3, 8: 7}[p.passes]
        if c.kind in ("valu", "vmem", "ds") and vw & (c.r | c.w): upd(big, "mfma D->valu/mem")
        if c.kind == "mfma":
            if vw & set(c.A + c.B): upd(big, "mfma D->mfma AB")
            if vw & set(c.C) and c.C != p.D: upd(ov, "mfma D->mfma C overlap")
        if c.kind == "valu" and set(p.C) & c.w: upd(war, "mfma C WAR")
    if p.kind == "salu" and "m0" in p.w and c.kind == "vmem" and c.lds: upd(1, "m0->lds dma")
    if p.kind == "vmem" and p.data and p.data & c.w: upd(2 if c.kind == "valu" else 1, "store data WAR")
    return n, why

def check(text):
    ins = []; labels = {}
    intext = False
    for ln, l in enumerate(text.split("\n"), 1):
        l = l.split(";")[0].strip()
        if not l: continue
        if l.startswith(".section"): break
        if l.endswith(":"): labels[l[:-1]] = len(ins); continue
        if l.startswith("."): continue
        ins.append(Ins(l, ln))
    preds = [[] for _ in ins]
    for i, x in enumerate(ins):
        if x.op.startswith(("s_branch", "s_cbranch")):
            t = labels[x.ops[0]]
            if t < len(ins): preds[t].append(i)
        if x.op not in ("s_branch", "s_endpgm") and i + 1 < len(ins): preds[i + 1].append(i)
    bad = 0
    for i, c in enumerate(ins):
        stack = [(p, 0) for p in preds[i]]; seen = {}
        while stack:
            p, d = stack.pop()
            if seen.get(p, 99) <= d: continue
            seen[p] = d
            n, why = need(ins[p], c)
            if n > d:
                print(f"HAZARD {why}: need {n} have {d}: line {ins[p].ln} '{ins[p].text}' -> line {c.ln} '{c.text}'"); bad += 1
            d2 = d + ins[p].states
            if d2 < 12:
                for q in preds[p]: stack.append((q, d2))
    return bad

if __name__ == "__main__":
    b = check(open(sys.argv[1]).read())
    print("hazards:", b)
```

```python
import sys, struct
from asmlib import *
import hazcheck

MBOX = 0
PBASE = 0x100000
GBASE = 0x1000000
STAMP = 0x1400000
WS_BYTES = 0x1800000
OOB = 0x7ff00000
RING = 0
XIMG = 98304
HIMG = XIMG
GST = XIMG + 40960
RAWX = 155648
LDS_BYTES = 163840
DX = 0
DW = 57344
SX, SA, SB, SW, SO, SD = 8, 12, 16, 20, 24, 28
sR, sJ, sC, sWV = 32, 33, 34, 35
SPIN = 20000

def f32(x):
    return "0x%08x" % struct.unpack("<I", struct.pack("<f", x))[0]

def vr(b, n=4):
    return f"v[{b}:{b+n-1}]"

def mfma(d, a, b, c=None):
    cc = vr(d) if c is None else c
    return f"v_mfma_f32_16x16x32_bf16 {vr(d)}, {vr(a)}, {vr(b)}, {cc}"

def weave(a, main, fill, first=0, per=1):
    fill = list(fill)
    for i, m in enumerate(main):
        a(m)
        if i >= first:
            for _ in range(per):
                if fill: a(fill.pop(0))
    for f in fill: a(f)

class Gen:
    def __init__(self, mapping=4, depth=5, stamps=False):
        self.a = Asm(); self.mapping = mapping; self.D = depth; self.stamps = stamps

    def stamp(self, i):
        if self.stamps:
            self.a(f"s_memtime s[{72+2*i}:{73+2*i}]")

    def stamp_out(self, n):
        if not self.stamps: return
        a = self.a
        a("s_memrealtime s[68:69]")
        a("s_getreg_b32 s67, hwreg(HW_REG_XCC_ID)")
        a("s_waitcnt lgkmcnt(0)")
        a("v_mov_b32 v16, s70"); a("v_mov_b32 v17, s68"); a("v_mov_b32 v18, s67")
        for i in range(1, 14):
            if i < n:
                a(f"s_sub_u32 s66, s{72+2*i}, s72"); a(f"v_mov_b32 v{18+i}, s66")
            else:
                a(f"v_mov_b32 v{18+i}, 0")
        a("s_lshl_b32 s66, s2, 3"); a(f"s_add_u32 s66, s66, s{sWV}"); a("s_lshl_b32 s66, s66, 6")
        a(f"s_add_u32 s66, s66, {STAMP}")
        a("s_mov_b64 exec, 1")
        for i in range(4):
            a(f"buffer_store_dwordx4 {vr(16+4*i)}, off, s[{SW}:{SW+3}], s66 offset:{16*i}")
        a("s_mov_b64 exec, -1")

    def prologue(self):
        a = self.a
        if self.stamps:
            a("s_memrealtime s[70:71]")
        self.stamp(0)
        a("s_load_dwordx2 s[4:5], s[0:1], 0")
        a("s_load_dwordx4 s[36:39], s[0:1], 24")
        a("s_load_dwordx8 s[40:47], s[0:1], 48")
        a("s_load_dwordx2 s[48:49], s[0:1], 80")
        a("s_cmp_ge_u32 s2, 256")
        a("s_cbranch_scc1 L_end")
        a("s_getpc_b64 s[6:7]")
        a("s_bfe_u32 s50, s2, 0x30003")
        a("s_mul_i32 s50, s50, 3072")
        a("v_lshrrev_b32 v1, 6, v0")
        a("v_and_b32 v2, 63, v0")
        a("v_mad_u32_u24 v3, v1, 3, v2")
        a("v_lshl_add_u32 v3, v3, 7, s50")
        a(f"v_readfirstlane_b32 s{sWV}, v1")
        a("s_mov_b64 exec, 7")
        a("global_load_dword v1, v3, s[6:7]")
        a("s_mov_b64 exec, -1")
        m = self.mapping
        lb = {8: 3, 4: 2, 2: 1, 1: 0}[m]
        a(f"s_and_b32 s{sJ}, s2, {m-1}")
        a(f"s_lshr_b32 s50, s2, {5+lb}")
        a(f"s_lshl_b32 s50, s50, {lb}")
        a(f"s_or_b32 s{sJ}, s{sJ}, s50")
        a(f"s_bfe_u32 s{sR}, s2, {hex((5 << 16) | lb)}")
        a(f"s_lshr_b32 s50, s{sR}, {3-lb}")
        a(f"s_add_u32 s50, s50, s{sJ}")
        a("s_mul_i32 s51, s50, 37")
        a("s_lshr_b32 s51, s51, 8")
        a("s_mul_i32 s51, s51, 7")
        a(f"s_sub_u32 s{sC}, s50, s51")
        a("v_lshrrev_b32 v5, 3, v0")
        a("v_and_b32 v6, 7, v0")
        a(f"s_mov_b32 s{SX+2}, {2048*896}")
        a(f"s_mov_b32 s{SX+3}, 0x00020000")
        a(f"s_cmp_eq_u32 s{sJ}, 7")
        a("s_cbranch_scc1 L_dft")
        a("v_and_b32 v7, 31, v5")
        a("v_lshrrev_b32 v8, 5, v5")
        a("v_lshl_add_u32 v7, v7, 1, v8")
        a(f"v_lshl_add_u32 v7, v7, 5, s{sR}")
        a("v_mul_u32_u24 v7, 896, v7")
        a("v_lshl_add_u32 v7, v6, 4, v7")
        a(f"s_lshl_b32 s52, s{sC}, 7")
        for k in range(1, 7):
            a(f"s_add_u32 s{52+k}, s{51+k}, 128")
            a(f"s_cmp_eq_u32 s{52+k}, 896")
            a(f"s_cselect_b32 s{52+k}, 0, s{52+k}")
        a("s_waitcnt lgkmcnt(0)")
        a(f"s_mov_b32 s{SX}, s4")
        a(f"s_and_b32 s{SX+1}, s5, 0xffff")
        for k in range(7):
            a(f"buffer_load_dwordx4 {vr(16+4*k)}, v7, s[{SX}:{SX+3}], s{52+k} offen")
        srd(a, SW, 48, WS_BYTES)
        srd(a, SD, 46, 256)
        self.ximg_waddr(XIMG)
        a("v_and_b32 v10, 7, v5")
        a("v_xor_b32 v10, v10, v6")
        a("v_lshlrev_b32 v10, 4, v10")
        a("v_lshl_add_u32 v10, v5, 7, v10")
        a(f"v_add_u32 v10, {RAWX}, v10")
        a("v_mov_b32 v12, 0xffff0000")
        a("s_mov_b32 s60, 0x3f803f80")
        a(f"s_cmp_ge_u32 s{sWV}, 4")
        a("s_cbranch_scc1 L_helper")

    def ximg_waddr(self, base):
        a = self.a
        a("v_lshrrev_b32 v8, 2, v6")
        a("v_and_b32 v11, 3, v6")
        a("v_mad_u32_u24 v9, v8, 12, v11")
        a("v_and_b32 v13, 15, v5")
        a("v_xor_b32 v9, v9, v13")
        a("v_lshlrev_b32 v9, 4, v9")
        a("v_lshl_add_u32 v9, v11, 8, v9")
        a("v_lshl_add_u32 v9, v8, 12, v9")
        a("v_lshrrev_b32 v13, 4, v5")
        a("v_lshl_add_u32 v9, v13, 10, v9")
        if base: a(f"v_add_u32 v9, {base}, v9")

    def ximg_raddr(self, d0, d1, base):
        a = self.a
        a("v_and_b32 v8, 15, v2")
        a("v_lshrrev_b32 v11, 4, v2")
        a(f"v_xor_b32 v{d0}, v8, v11")
        a(f"v_lshlrev_b32 v{d0}, 4, v{d0}")
        a(f"v_lshl_add_u32 v{d0}, v11, 8, v{d0}")
        a(f"v_xor_b32 v{d1}, {12*16}, v{d0}")
        if base: a(f"v_add_u32 v{d0}, {base}, v{d0}")
        a(f"v_add_u32 v{d1}, {base+4096}, v{d1}")

    def ln_stats(self):
        a = self.a
        a("s_nop 2")
        for pat in ("quad_perm:[1,0,3,2]", "quad_perm:[2,3,0,1]", "row_half_mirror"):
            a(f"v_add_f32_dpp v14, v14, v14 {pat} row_mask:0xf bank_mask:0xf")
            a(f"v_add_f32_dpp v15, v15, v15 {pat} row_mask:0xf bank_mask:0xf")
            a("s_nop 0")
        a(f"v_mul_f32 v13, {f32(1/448)}, v14")
        a(f"v_mul_f32 v15, {f32(1/448)}, v15")
        a("v_fma_f32 v15, -v13, v13, v15")
        a("v_max_f32 v15, 0, v15")
        a(f"v_add_f32 v15, {f32(1e-5)}, v15")
        a("v_rsq_f32 v14, v15")
        a("s_nop 0")
        a("v_mul_f32 v15, v13, v14")
        a("v_sub_f32 v15, 0, v15")

    def ln_ffn(self, younger, after_wait0=None, hooks=None):
        a = self.a
        X, U = 16, 44
        a("v_mov_b32 v14, 0"); a("v_mov_b32 v15, 0")
        for k in range(7):
            a(f"s_waitcnt vmcnt({younger + 6 - k})")
            if k == 0 and after_wait0:
                younger += after_wait0()
            for i in range(4):
                x = X + 4*k + i; u = U + 8*k + 2*i
                a(f"v_dot2_f32_bf16 v14, v{x}, s60, v14")
                a(f"v_dot2_f32_bf16 v15, v{x}, v{x}, v15")
                a(f"v_lshlrev_b32 v{u}, 16, v{x}")
                a(f"v_and_b32 v{u+1}, v12, v{x}")
            if k == 0:
                a(f"ds_write_b128 v10, {vr(X)}")
        self.stamp(1)
        self.ln_stats()
        for k in range(7):
            o = 100 + 4*(k % 2)
            for i in range(4):
                u = U + 8*k + 2*i
                a(f"v_fma_f32 v{u}, v{u}, v14, v15")
                a(f"v_fma_f32 v{u+1}, v{u+1}, v14, v15")
                a(f"v_cvt_pk_bf16_f32 v{X+4*k+i}, v{u}, v{u+1}")
            a(f"ds_write_b128 v9, {vr(X+4*k)} offset:{k*8192}")
            if hooks and k in hooks: hooks[k]()

    def compute(self):
        a = self.a
        WF = [16, 32]; XF = [48, 64]; ACC = 128; HF = 128; AC2 = 48; PK = 64; HT = 80
        WB, WA, XA = 112, 116, 120
        W2B, W2A, HA, PA, FA, ONE = 122, 123, 124, 125, 126, 127
        sPair, sIt, sP, sF, sCc = 50, 51, 52, 53, 54
        a(f"s_lshl_b32 s61, s{sR}, 3"); a(f"s_add_u32 s61, s61, s{sC}"); a("s_lshl_b32 s61, s61, 8")
        a(f"s_lshl_b32 s62, s{sR}, 2")
        a(f"s_cmp_eq_u32 s{sWV}, 0")
        a(f"s_cselect_b32 s61, s61, {OOB}")
        a(f"s_cselect_b32 s63, s62, 0x1000")
        a("v_lshlrev_b32 v3, 2, v2")
        a("v_mov_b32 v8, 0")
        a(f"buffer_store_dword v8, v3, s[{SW}:{SW+3}], s61 offen sc1")
        a(f"v_mov_b32 v{ONE}, 1")
        for i in range(64):
            a(f"v_mov_b32 v{ACC+i}, 0")
        a("v_lshrrev_b32 v3, 2, v2")
        a("v_lshlrev_b32 v3, 7, v3")
        a("v_and_b32 v4, 3, v2")
        a("v_lshl_add_u32 v3, v4, 3, v3")
        a("v_bfe_u32 v4, v2, 3, 2")
        a("v_lshl_add_u32 v3, v4, 5, v3")
        a(f"s_lshl_b32 s55, s{sWV}, 12")
        a(f"s_lshl_b32 s56, s{sWV}, 5")
        for u in range(4):
            a(f"v_xor_b32 v{WB+u}, {32*u}, v3")
            a(f"v_add_u32 v{WB+u}, s55, v{WB+u}")
            a(f"v_mov_b32 v{WA+u}, v{WB+u}")
        a(f"v_xor_b32 v{W2B}, s56, v3")
        self.ximg_raddr(XA, XA+1, XIMG)
        a(f"v_lshlrev_b32 v{HA}, 4, v2")
        a(f"v_add_u32 v{HA}, {HIMG}, v{HA}")
        a(f"s_mul_i32 s55, s{sR}, 344064"); a(f"s_lshl_b32 s56, s{sWV}, 11"); a("s_add_u32 s55, s55, s56")
        a(f"s_add_u32 s55, s55, {PBASE}")
        a(f"v_lshl_add_u32 v{PA}, v2, 4, s55")
        a(f"s_lshl_b32 s55, s{sR}, 11"); a(f"s_lshl_b32 s56, s{sWV}, 2"); a("s_add_u32 s55, s55, s56")
        a(f"v_mov_b32 v{FA}, {OOB}")
        a(f"v_writelane_b32 v{FA}, s55, 0")

        self.ln_ffn(1)
        a("s_waitcnt vmcnt(0)")
        a("s_mov_b64 exec, 1")
        a(f"buffer_atomic_add v{ONE}, off, s[{SD}:{SD+3}], s63 sc1")
        a("s_mov_b64 exec, -1")

        def rd1(st, half):
            w = [f"ds_read_b64_tr_b16 {vr(WF[st]+4*u+2*h, 2)}, v{WA+u} offset:{half*16384 + h*2048}" for u in range(4) for h in range(2)]
            x = [f"ds_read_b128 {vr(XF[st]+4*t)}, v{XA+half} offset:{t*1024}" for t in range(4)]
            return [x[0], w[0], w[1], x[1], w[2], w[3], x[2], w[4], w[5], x[3], w[6], w[7]]
        def mm1(st):
            return [mfma(ACC + (u*4+t)*4, WF[st]+4*u, XF[st]+4*t) for u in range(4) for t in range(4)]
        def rd2(st, half):
            return [f"ds_read_b64_tr_b16 {vr(WF[st]+4*k+2*h, 2)}, v{W2A} offset:{half*16384 + k*4096 + h*2048}" for k in range(4) for h in range(2)]
        def mm2(st, half, zero=False):
            return [mfma(AC2+4*t, WF[st]+4*k, HF + ((4*half+k)*4+t)*4, "0" if (zero and k == 0) else None) for k in range(4) for t in range(4)]
        def adv_pair():
            return [f"s_add_u32 s{sPair}, s{sPair}, 32768", f"s_cmp_eq_u32 s{sPair}, 98304", f"s_cselect_b32 s{sPair}, 0, s{sPair}"]

        a(f"s_mov_b32 s{sPair}, 0"); a(f"s_mov_b32 s{sIt}, 0")
        a("s_waitcnt lgkmcnt(0)")
        a("s_barrier")
        self.stamp(2)
        for r in rd1(0, 0): a(r)
        a.raw(".p2align 3")
        a.label("L_g1")
        a("s_waitcnt lgkmcnt(0)")
        a("s_barrier")
        ap = adv_pair()
        weave(a, mm1(0), rd1(1, 1) + [ap[0] + "\n" + ap[1], ap[2] + f"\ns_cmp_eq_u32 s{sIt}, 6"])
        a("s_cbranch_scc1 L_g1_last")
        a(f"s_add_u32 s{sIt}, s{sIt}, 1")
        for u in range(4): a(f"v_add_u32 v{WA+u}, s{sPair}, v{WB+u}")
        a(f"v_add_u32 v{XA}, 8192, v{XA}")
        a("s_waitcnt lgkmcnt(0)")
        a("s_barrier")
        weave(a, mm1(1), rd1(0, 0) + [f"v_add_u32 v{XA+1}, 8192, v{XA+1}"])
        a("s_branch L_g1")
        a.raw(".p2align 3")
        a.label("L_g1_last")
        a(f"v_add_u32 v{W2A}, s{sPair}, v{W2B}")
        a(f"buffer_load_dword v4, off, s[{SD}:{SD+3}], s62 sc1")
        a("s_waitcnt lgkmcnt(0)")
        a("s_barrier")
        self.stamp(3)
        a(f"s_lshl_b32 s55, s{sWV}, 13")
        a(f"v_add_u32 v3, s55, v{HA}")
        groups = [(v, t) for v in range(2) for t in range(4)]
        def epi(n):
            v, t = groups[n]
            o = HT + 4*n; l = []
            for i in range(2):
                s = ACC + ((2*v+i)*4+t)*4
                l.append(f"v_cvt_pk_bf16_f32 v{o+2*i}, v{s}, v{s+1}")
                l.append(f"v_cvt_pk_bf16_f32 v{o+2*i+1}, v{s+2}, v{s+3}")
            for i in range(4):
                l.append(f"v_pk_max_i16 v{o+i}, v{o+i}, 0")
            l.append(f"ds_write_b128 v3, {vr(o)} offset:{v*4096 + t*1024}")
            return l
        r2 = rd2(0, 0)
        for n, (v, t) in enumerate(groups):
            for i in range(2):
                a(mfma(ACC + ((2*v+i)*4+t)*4, WF[1]+4*(2*v+i), XF[1]+4*t))
                if n < 2:
                    a(r2.pop(0)); a(r2.pop(0))
                elif n >= 3:
                    e = epi(n-3)
                    for x in (e[:4] if i == 0 else e[4:]): a(x)
        for n in range(5, 8):
            for x in epi(n): a(x)
        a("s_waitcnt lgkmcnt(0)")
        a("s_barrier")
        self.stamp(4)
        hr = [f"ds_read_b128 {vr(HF+(k*4+t)*4)}, v{HA} offset:{k*4096+t*1024}" for k in range(8) for t in range(4)]
        seq = hr[:16] + rd2(1, 1) + hr[16:]
        for x in seq[:12]: a(x)
        m = mm2(0, 0, True); pos = 12
        for k in range(4):
            need = 4*(k+1)
            a(f"s_waitcnt lgkmcnt({pos - need})")
            for t in range(4):
                a(m[4*k+t])
                n = 1 if k == 0 else 2
                if k > 0 and t == 0: n = 0
                for _ in range(n):
                    if pos < len(seq) and (k == 3 or pos - need < 15): a(seq[pos]); pos += 1
        while pos < len(seq): a(seq[pos]); pos += 1
        for x in adv_pair(): a(x)
        a(f"v_add_u32 v{W2A}, s{sPair}, v{W2B}")
        a("s_waitcnt lgkmcnt(0)")
        a("s_barrier")
        fill = rd2(0, 0) + [
            f"s_add_u32 s{sCc}, s{sC}, 1\ns_cmp_eq_u32 s{sCc}, 7",
            f"s_cselect_b32 s{sCc}, 0, s{sCc}\ns_mov_b32 s{sIt}, 1",
            f"s_mul_i32 s{sP}, s{sCc}, 49152",
            f"s_lshl_b32 s57, s{sCc}, 8\ns_mov_b32 s58, s{sCc}"]
        weave(a, mm2(1, 1), fill)
        a("s_mov_b32 s59, 0")
        a.label("L_rdy")
        a("s_waitcnt vmcnt(0)")
        a("v_readfirstlane_b32 s55, v4")
        a("s_add_u32 s59, s59, 1")
        a("s_cmp_ge_u32 s55, 7")
        a("s_cbranch_scc1 L_g2")
        a(f"s_cmp_ge_u32 s59, {SPIN}")
        a("s_cbranch_scc1 L_g2")
        a(f"buffer_load_dword v4, off, s[{SD}:{SD+3}], s62 sc1")
        a("s_branch L_rdy")
        a.raw(".p2align 3")
        a.label("L_g2")
        a("s_waitcnt lgkmcnt(0)")
        a("s_barrier")
        r2 = rd2(1, 1); m = mm2(0, 0, True)
        for x in r2[:4]: a(x)
        for t in range(4):
            a(f"v_cvt_pk_bf16_f32 v{PK+2*t}, v{AC2+4*t}, v{AC2+4*t+1}")
            a(f"v_cvt_pk_bf16_f32 v{PK+2*t+1}, v{AC2+4*t+2}, v{AC2+4*t+3}")
            a(m[t])
        fill = r2[4:] + [
            f"buffer_store_dwordx4 {vr(PK)}, v{PA}, s[{SW}:{SW+3}], s{sP} offen sc1",
            f"buffer_store_dwordx4 {vr(PK+4)}, v{PA}, s[{SW}:{SW+3}], s{sP} offen offset:1024 sc1",
            f"s_add_u32 s{sP}, s{sP}, 57344",
            f"s_add_u32 s{sCc}, s{sCc}, 1\ns_cmp_eq_u32 s{sCc}, 7",
            f"s_cselect_b32 s55, 344064, 0",
            f"s_cselect_b32 s{sCc}, 0, s{sCc}\ns_sub_u32 s{sP}, s{sP}, s55",
            ap[0] + "\n" + ap[1], ap[2] + f"\ns_cmp_eq_u32 s{sIt}, 6"]
        weave(a, m[4:], fill)
        a(f"v_add_u32 v{W2A}, s{sPair}, v{W2B}")
        a("s_waitcnt lgkmcnt(0)")
        a("s_cbranch_scc1 L_g2_nb")
        a("s_barrier")
        a.label("L_g2_nb")
        fill = rd2(0, 0) + [
            f"s_cmp_ge_u32 s{sIt}, 3\ns_nop 0",
            f"s_cselect_b32 s{sF}, s57, {OOB}",
            f"s_cselect_b32 s55, 272, 0",
            f"s_cselect_b32 s56, 1, 0\ns_add_u32 s57, s57, s55",
            f"s_add_u32 s58, s58, s56\ns_cmp_eq_u32 s58, 7",
            f"s_cselect_b32 s55, 1792, 0",
            f"s_cselect_b32 s58, 0, s58\ns_sub_u32 s57, s57, s55"]
        weave(a, mm2(1, 1), fill)
        a("s_waitcnt vmcnt(6)")
        a(f"s_add_u32 s{sIt}, s{sIt}, 1")
        a(f"buffer_store_dword v{ONE}, v{FA}, s[{SW}:{SW+3}], s{sF} offen sc1")
        a(f"s_cmp_le_u32 s{sIt}, 6")
        a("s_cbranch_scc1 L_g2")
        self.stamp(5)
        a(f"s_lshl_b32 s55, s{sWV}, 12")
        a(f"v_add_u32 v3, s55, v{HA}")
        a("s_nop 2")
        for t in range(4):
            a(f"ds_write_b128 v3, {vr(AC2+4*t)} offset:{t*1024}")
        a("s_waitcnt vmcnt(4)")
        a(f"buffer_store_dword v{ONE}, v{FA}, s[{SW}:{SW+3}], s57 offen sc1")
        a("s_add_u32 s57, s57, 272")
        a("s_cmp_eq_u32 s58, 6")
        a("s_cselect_b32 s55, 1792, 0")
        a("s_sub_u32 s57, s57, s55")
        a("s_waitcnt vmcnt(2)")
        a(f"buffer_store_dword v{ONE}, v{FA}, s[{SW}:{SW+3}], s57 offen sc1")
        self.stamp(6)
        a("s_waitcnt lgkmcnt(0)")
        a("s_barrier")
        self.stamp_out(7)
        a("s_endpgm")

    def helper(self):
        a = self.a; D = self.D
        A1, A2 = 112, 116
        TW = 128
        sU, sM0, sOff, sSlot, sIt, sKh = 50, 51, 52, 53, 54, 55
        sPp, sHh, sMir, sGA, sGB = 56, 57, 58, 59, 61
        a.label("L_helper")
        srd(a, SA, 40, 448*1792*2)
        srd(a, SB, 42, 448*1792*2)
        srd(a, SO, 44, 2048*896)
        a(f"s_sub_u32 s{sU}, s{sWV}, 4")
        a("v_lshrrev_b32 v3, 4, v2")
        a("v_lshlrev_b32 v3, 1, v3")
        a("v_xor_b32 v3, v3, v6")
        a("v_lshlrev_b32 v3, 4, v3")
        a("v_bfe_u32 v4, v2, 3, 2")
        a("v_lshrrev_b32 v8, 5, v2")
        a("v_lshl_add_u32 v4, v8, 3, v4")
        a("v_mul_u32_u24 v4, 3584, v4")
        a(f"s_lshl_b32 s62, s{sJ}, 9"); a(f"s_lshl_b32 s63, s{sU}, 7"); a("s_add_u32 s62, s62, s63")
        a(f"v_add3_u32 v{A1}, v3, v4, s62")
        for i in range(1, 4):
            a(f"v_add_u32 v{A1+i}, {(16*(i&1) + 4*(i>>1))*3584 - 1024*i}, v{A1}")
        a("v_lshrrev_b32 v4, 3, v2")
        a(f"s_lshl_b32 s62, s{sJ}, 8"); a(f"s_lshl_b32 s63, s{sU}, 5"); a("s_add_u32 s62, s62, s63")
        a("v_add_u32 v4, s62, v4")
        a("v_mul_u32_u24 v4, 896, v4")
        a(f"v_add_u32 v{A2}, v3, v4")
        for i in range(1, 4):
            a(f"v_add_u32 v{A2+i}, {8*896*i - 1024*i}, v{A2}")
        a(f"s_lshl_b32 s{sM0}, s{sU}, 12")
        a(f"s_mul_i32 s{sOff}, s{sC}, {64*3584}")
        a(f"s_mov_b32 s{sSlot}, 0")

        def next_slot():
            a(f"s_add_u32 s{sSlot}, s{sSlot}, 16384")
            a(f"s_cmp_eq_u32 s{sSlot}, 98304")
            a(f"s_cselect_b32 s{sSlot}, 0, s{sSlot}")
        def issue1():
            a(f"s_add_u32 m0, s{sM0}, s{sSlot}")
            next_slot()
            for i in range(4):
                a(f"buffer_load_dwordx4 v{A1+i}, s[{SA}:{SA+3}], s{sOff} offen offset:{1024*i} lds")
            a(f"s_add_u32 s{sOff}, s{sOff}, {32*3584}")
            a(f"s_cmp_eq_u32 s{sOff}, {448*3584}")
            a(f"s_cselect_b32 s{sOff}, 0, s{sOff}")
        def issue2():
            a(f"s_add_u32 m0, s{sM0}, s{sSlot}")
            next_slot()
            a(f"s_add_u32 s62, s{sOff}, s{sKh}")
            for i in range(4):
                a(f"buffer_load_dwordx4 v{A2+i}, s[{SB}:{SB+3}], s62 offen offset:{1024*i} lds")
            a(f"s_xor_b32 s{sKh}, s{sKh}, {128*896}")
            a("s_cselect_b32 s62, 0, 128")
            a(f"s_add_u32 s{sOff}, s{sOff}, s62")
            a(f"s_cmp_eq_u32 s{sOff}, 896")
            a(f"s_cselect_b32 s{sOff}, 0, s{sOff}")

        issue1(); issue1()
        self.ln_ffn(8, hooks={3: issue1})
        issued = 3
        s = 0
        while issued < s + D:
            a(f"s_waitcnt vmcnt({4*(issued - s - 1)}) lgkmcnt(0)")
            a("s_barrier")
            if s == 0: self.stamp(2)
            n = min(2, s + D + 1 - issued)
            for _ in range(n): issue1()
            issued += n; s += 1
        a(f"s_mov_b32 s{sIt}, {issued}")
        a.label("L_h1")
        a(f"s_waitcnt vmcnt({4*(D-1)}) lgkmcnt(0)")
        a("s_barrier")
        issue1()
        a(f"s_add_u32 s{sIt}, s{sIt}, 1")
        a(f"s_cmp_lt_u32 s{sIt}, 14")
        a("s_cbranch_scc1 L_h1")
        a(f"s_add_u32 s{sOff}, s{sC}, 1")
        a(f"s_cmp_eq_u32 s{sOff}, 7")
        a(f"s_cselect_b32 s{sOff}, 0, s{sOff}")
        a(f"s_lshl_b32 s{sOff}, s{sOff}, 7")
        a(f"s_mov_b32 s{sKh}, 0")
        a.label("L_h2")
        a(f"s_waitcnt vmcnt({4*(D-1)})")
        a("s_barrier")
        issue2()
        a(f"s_add_u32 s{sIt}, s{sIt}, 1")
        a(f"s_cmp_lt_u32 s{sIt}, 28")
        a("s_cbranch_scc1 L_h2")
        self.stamp(3)

        work = []
        b = Asm()
        b(f"s_and_b32 s{sPp}, s{sU}, 1"); b(f"s_lshr_b32 s{sHh}, s{sU}, 1")
        b(f"s_lshl_b32 s62, s{sC}, 1"); b(f"s_add_u32 s62, s62, s{sHh}")
        b(f"s_lshl_b32 s63, s{sPp}, 5"); b(f"s_add_u32 s63, s63, s{sR}")
        b("s_sub_u32 s64, 13, s62"); b("s_sub_u32 s65, 14, s62")
        b("s_cmp_eq_u32 s65, 7"); b("s_cselect_b32 s65, 0, s65")
        b("s_sub_u32 s66, 64, s63"); b("s_and_b32 s66, s66, 63")
        b("s_cmp_ge_u32 s62, 7")
        b(f"s_cselect_b32 s{sMir}, 1, 0")
        b("s_cselect_b32 s64, s64, s62"); b("s_cselect_b32 s65, s65, s62"); b("s_cselect_b32 s66, s66, s63")
        b(f"s_cselect_b32 s67, {f32(-1.0)}, {f32(1.0)}".replace(f32(-1.0), "-1.0").replace(f32(1.0), "1.0"))
        b("s_mul_i32 s66, s66, 7")
        b(f"s_add_u32 s{sGA}, s66, s64"); b(f"s_add_u32 s{sGB}, s66, s65")
        b(f"s_lshl_b32 s{sGA}, s{sGA}, 12"); b(f"s_lshl_b32 s{sGB}, s{sGB}, 12")
        b(f"s_add_u32 s{sGA}, s{sGA}, {GBASE}"); b(f"s_add_u32 s{sGB}, s{sGB}, {GBASE}")
        b(f"s_cmp_eq_u32 s{sMir}, 1"); b(f"s_cselect_b32 s{sGB}, s{sGB}, {OOB}")
        b("v_mov_b32 v100, s64"); b("v_mov_b32 v3, s65")
        b("v_cmp_le_u32 vcc, 32, v2"); b("v_and_b32 v4, 31, v2"); b("s_nop 0")
        b("v_cndmask_b32 v100, v100, v3, vcc")
        b("v_lshlrev_b32 v100, 8, v100"); b("v_lshl_add_u32 v100, v4, 2, v100")
        b(f"s_lshl_b32 s64, s{sR}, 11"); b("s_add_u32 s65, s64, 128")
        b("v_add_u32 v100, s65, v100")
        b(f"s_lshl_b32 s65, s{sC}, 8"); b("s_add_u32 s65, s65, s64")
        b("v_lshl_add_u32 v101, v4, 2, s65")
        b("v_lshlrev_b32 v103, 4, v2")
        b(f"s_mul_i32 s64, s{sR}, 344064"); b(f"s_mul_i32 s65, s{sC}, 49152"); b("s_add_u32 s64, s64, s65")
        b(f"s_lshl_b32 s65, s{sHh}, 12"); b("s_add_u32 s64, s64, s65")
        b(f"s_lshl_b32 s65, s{sPp}, 10"); b("s_add_u32 s64, s64, s65"); b(f"s_add_u32 s64, s64, {PBASE}")
        b("v_add_u32 v102, s64, v103")
        b("v_and_b32 v3, 3, v2"); b("v_cmp_eq_u32 vcc, 0, v3")
        b("s_cmp_eq_u32 s62, 0"); b(f"s_cselect_b32 s64, 1, s{sMir}"); b("s_mul_i32 s64, s64, 0xffff")
        b("v_mov_b32 v3, s64"); b(f"v_mov_b32 v4, {OOB}")
        b("v_cndmask_b32 v104, 0, v3, vcc"); b("v_cndmask_b32 v105, v4, v103, vcc")
        work.append(b.lines)
        for rt in range(2):
            b = Asm()
            b("v_and_b32 v3, 15, v2")
            b(f"v_lshl_add_u32 v3, v3, 6, s63")
            if rt: b("v_add_u32 v3, 1024, v3")
            b("v_lshrrev_b32 v4, 4, v2"); b("v_lshlrev_b32 v4, 3, v4")
            b("v_mul_u32_u24 v4, v4, v3")
            b("v_cvt_f32_u32 v3, v3"); b("v_cvt_f32_u32 v4, v4")
            b(f"v_mul_f32 v3, {f32(1/2048)}, v3"); b(f"v_mul_f32 v4, {f32(1/2048)}, v4")
            b("v_mul_f32 v3, s67, v3"); b("v_mul_f32 v4, s67, v4")
            for q in range(8):
                b(f"v_fract_f32 v8, v4")
                b(f"v_cos_f32 v{16+q}, v8")
                b(f"v_sin_f32 v{24+q}, v8")
                b("v_add_f32 v4, v4, v3")
            for i in range(4):
                b(f"v_cvt_pk_bf16_f32 v{TW+4*rt+i}, v{16+2*i}, v{17+2*i}")
                b(f"v_cvt_pk_bf16_f32 v{TW+8+4*rt+i}, v{24+2*i}, v{25+2*i}")
            work.append(b.lines)
        b = Asm()
        b(f"s_lshl_b32 s64, s{sU}, 12"); b(f"s_add_u32 s64, s64, {GST}")
        b("v_add_u32 v106, s64, v103")
        b("v_lshrrev_b32 v3, 4, v2"); b("v_bfe_u32 v4, v2, 2, 2"); b("v_lshl_add_u32 v3, v3, 3, v4")
        b("v_and_b32 v4, 3, v2"); b("v_lshlrev_b32 v4, 3, v4"); b("v_lshl_add_u32 v3, v3, 7, v4")
        b("v_add_u32 v107, s64, v3")
        b(f"s_lshl_b32 s64, s{sHh}, 13"); b(f"s_lshl_b32 s65, s{sPp}, 11"); b("s_add_u32 s64, s64, s65")
        b(f"s_add_u32 s64, s64, {HIMG}"); b("v_add_u32 v108, s64, v103")
        b(f"s_lshl_b32 s64, s{sPp}, 12"); b(f"s_add_u32 s64, s64, {RAWX}"); b(f"s_lshl_b32 s65, s{sHh}, 2")
        b("v_lshrrev_b32 v3, 5, v2"); b("v_add_u32 v3, s65, v3"); b("v_xor_b32 v3, v3, v6")
        b("v_lshlrev_b32 v3, 4, v3"); b("v_bfe_u32 v4, v2, 4, 1"); b("v_lshl_add_u32 v3, v4, 3, v3")
        b("v_and_b32 v4, 15, v2"); b("v_lshl_add_u32 v3, v4, 7, v3")
        b("v_xor_b32 v4, 32, v3"); b("v_add_u32 v109, s64, v3"); b("v_add_u32 v110, s64, v4")
        b("v_and_b32 v3, 3, v2"); b("v_add_u32 v3, s65, v3"); b("v_bfe_u32 v4, v2, 2, 3"); b("v_xor_b32 v4, v3, v4")
        b("v_lshrrev_b32 v8, 2, v2"); b("v_lshlrev_b32 v4, 4, v4"); b("v_lshl_add_u32 v4, v8, 7, v4")
        b("v_add_u32 v111, s64, v4")
        b("v_lshl_add_u32 v8, v8, 6, s63"); b("v_mul_u32_u24 v8, 896, v8"); b("v_lshl_add_u32 v8, v3, 4, v8")
        b(f"s_lshl_b32 s64, s{sC}, 7"); b("v_add_u32 v120, s64, v8")
        b("v_xor_b32 v121, 48, v2"); b("v_add_u32 v122, 16, v121"); b("v_and_b32 v122, 63, v122")
        b("v_lshlrev_b32 v121, 2, v121"); b("v_lshlrev_b32 v122, 2, v122")
        b("s_mov_b32 s62, 0x00003f80"); b("s_mov_b32 s63, 0x3f800000")
        b(f"s_lshl_b32 s64, s{sHh}, 1"); b("s_lshl_b32 s64, 3, s64")
        work.append(b.lines)
        for i in range(D):
            if work: a.lines += work.pop(0)
            a(f"s_waitcnt vmcnt({4*(D-1-i)})")
            a("s_barrier")
        for w in work: a.lines += w
        self.stamp(4)

        PD, SUM, GD, GP, GF, Y, Y2, XR = 144, 16, 32, 48, 52, 68, 84, 192
        def wait_partial(tau):
            a(f"s_lshl_b32 s65, s64, {4*tau}")
            a("s_mov_b32 s66, 0")
            a.label(f"L_pw{tau}")
            a("s_and_b32 s67, vcc_lo, s65")
            a("s_cmp_eq_u32 s67, s65")
            a(f"s_cbranch_scc1 L_pg{tau}")
            a("s_add_u32 s66, s66, 1")
            a(f"s_cmp_ge_u32 s66, {SPIN}")
            a(f"s_cbranch_scc1 L_pg{tau}")
            a(f"buffer_load_dword v3, v101, s[{SW}:{SW+3}], 0 offen sc1")
            a("s_waitcnt vmcnt(0)")
            a("v_cmp_ne_u32 vcc, 0, v3")
            a("s_nop 1")
            a(f"s_branch L_pw{tau}")
            a.label(f"L_pg{tau}")
            a(f"s_mov_b32 s65, {tau*8192}")
            for ct in range(2):
                a(f"buffer_load_dwordx4 {vr(PD+8*tau+4*ct)}, v102, s[{SW}:{SW+3}], s65 offen offset:{ct*2048} sc1")
        def add_partial(tau):
            for i in range(8):
                for h in range(2):
                    d = SUM + 2*i + h
                    a(f"v_dot2_f32_bf16 v{d}, v{PD+8*tau+i}, s{62+h}, {'0' if tau == 0 else f'v{d}'}")
        a("s_mov_b64 vcc, 0")
        for tau in range(3): wait_partial(tau)
        a("s_mov_b32 s52, vcc_lo")
        a("s_mov_b32 s66, 0")
        a.label("L_gw")
        a(f"buffer_load_dword v3, v100, s[{SW}:{SW+3}], 0 offen sc1")
        a("s_add_u32 s66, s66, 1")
        a("s_waitcnt vmcnt(0)")
        a("v_cmp_ne_u32 vcc, 0, v3")
        a(f"s_cmp_ge_u32 s66, {SPIN}")
        a("s_cbranch_scc1 L_gg")
        a("s_cmp_eq_u64 vcc, -1")
        a("s_cbranch_scc0 L_gw")
        a.label("L_gg")
        self.stamp(5)
        for i in range(4):
            a(f"buffer_load_dwordx4 {vr(GD+4*i)}, v103, s[{SW}:{SW+3}], s{sGA} offen offset:{1024*i} sc1")
        for i in range(4):
            a(f"buffer_load_ushort v{GP+i}, v105, s[{SW}:{SW+3}], s{sGB} offen offset:{1024*i} sc1")
        for tau in range(3): add_partial(tau)
        a("s_mov_b32 vcc_lo, s52")
        wait_partial(3)
        a("s_waitcnt vmcnt(2)")
        for i in range(4):
            a(f"v_bfi_b32 v{GD+4*i}, v104, v{GP+i}, v{GD+4*i}")
            a(f"ds_write_b128 v106, {vr(GD+4*i)} offset:{1024*i}")
        a("s_waitcnt lgkmcnt(0)")
        for ct in range(2):
            for part in range(2):
                for h in range(2):
                    a(f"ds_read_b64_tr_b16 {vr(GF+(ct*2+part)*4+2*h, 2)}, v107 offset:{h*512 + part*64 + ct*32}")
        for ct in range(2):
            for rt in range(2):
                a(f"ds_read_b64 {vr(XR+(ct*2+rt)*2, 2)}, v{109+ct} offset:{rt*2048}")
        a("s_waitcnt lgkmcnt(4)")
        for part in range(2):
            for ct in range(2):
                for rt in range(2):
                    a(mfma(Y+(ct*2+rt)*4, GF+(ct*2+part)*4, TW+8*part+4*rt, "0" if part == 0 else None))
        wait_partial(4)
        a(f"s_cmp_eq_u32 s{sMir}, 0")
        a("s_cbranch_scc1 L_nomir")
        a("s_nop 2")
        for ct in range(2):
            for rt in range(2):
                a(f"ds_bpermute_b32 v{Y2+(ct*2+rt)*4}, v122, v{Y+(ct*2+rt)*4}")
                for e in range(1, 4):
                    a(f"ds_bpermute_b32 v{Y2+(ct*2+rt)*4+e}, v121, v{Y+((1-ct)*2+rt)*4+4-e}")
        a("s_mov_b64 s[66:67], 0xffff")
        a("s_waitcnt lgkmcnt(0)")
        for ct in range(2):
            for rt in range(2):
                a(f"v_cndmask_b32 v{Y+(ct*2+rt)*4}, v{Y2+((1-ct)*2+rt)*4}, v{Y2+(ct*2+rt)*4}, s[66:67]")
                for e in range(1, 4):
                    a(f"v_mov_b32 v{Y+(ct*2+rt)*4+e}, v{Y2+(ct*2+rt)*4+e}")
        a.label("L_nomir")
        self.stamp(6)
        a("s_barrier")
        for ct in range(2):
            for rt in range(2):
                a(f"ds_read_b128 {vr(GD+(ct*2+rt)*4)}, v108 offset:{ct*4096 + rt*1024}")
        a("s_waitcnt vmcnt(2)")
        add_partial(3)
        a("s_waitcnt lgkmcnt(0)")
        a("s_nop 1")
        for i in range(16):
            a(f"v_add_f32 v{SUM+i}, v{SUM+i}, v{GD+i}")
        for i in range(8):
            a(f"v_lshlrev_b32 v{GD+2*i}, 16, v{XR+i}")
            a(f"v_and_b32 v{GD+2*i+1}, v12, v{XR+i}")
        wait_partial(5)
        self.stamp(7)
        a("s_waitcnt vmcnt(2)")
        add_partial(4)
        a("s_waitcnt vmcnt(0)")
        self.stamp(8)
        add_partial(5)
        T = 52
        a("s_nop 1")
        for i in range(16): a(f"v_mul_f32 v{T+i}, {f32(-1.4426950408889634)}, v{SUM+i}")
        for i in range(16): a(f"v_exp_f32 v{T+i}, v{T+i}")
        for i in range(16):
            a(f"v_add_f32 v{T+i}, 1.0, v{T+i}")
            a(f"v_mul_f32 v{Y+i}, v{Y+i}, v{SUM+i}")
        for i in range(16): a(f"v_rcp_f32 v{T+i}, v{T+i}")
        for n in range(4):
            for i in range(4*n, 4*n+4): a(f"v_fma_f32 v{Y+i}, v{Y+i}, v{T+i}, v{GD+i}")
            for i in range(2): a(f"v_cvt_pk_bf16_f32 v{XR+2*n+i}, v{Y+4*n+2*i}, v{Y+4*n+2*i+1}")
            a(f"ds_write_b64 v{109+n//2}, {vr(XR+2*n, 2)} offset:{(n%2)*2048}")
        a("s_waitcnt lgkmcnt(0)")
        for rt in range(2):
            a(f"ds_read_b128 {vr(GD+4*rt)}, v111 offset:{rt*2048}")
        a(f"s_mov_b32 s65, {16*64*896}")
        a("s_waitcnt lgkmcnt(1)")
        a(f"buffer_store_dwordx4 {vr(GD)}, v120, s[{SO}:{SO+3}], 0 offen")
        a("s_waitcnt lgkmcnt(0)")
        a(f"buffer_store_dwordx4 {vr(GD+4)}, v120, s[{SO}:{SO+3}], s65 offen")
        self.stamp(9)
        self.stamp_out(10)
        a("s_endpgm")

    def dft_head(self):
        a = self.a
        a.label("L_dft")
        a(f"v_lshl_add_u32 v7, v5, 5, s{sR}")
        a("v_mul_u32_u24 v7, 896, v7")
        a("v_lshl_add_u32 v7, v6, 4, v7")
        a("v_lshrrev_b32 v8, 2, v6")
        a("v_lshl_or_b32 v8, v8, 30, v7")
        a("s_waitcnt lgkmcnt(0)")
        a(f"s_mov_b32 s{SX}, s4")
        a(f"s_and_b32 s{SX+1}, s5, 0xffff")
        for k in range(4):
            for h in range(2):
                a(f"buffer_load_dwordx4 {vr(16+8*k+4*h)}, v{8 if k == 3 else 7}, s[{SX}:{SX+3}], 0 offen offset:{128*k + 448*h}")
        a("s_branch L_dft2")

    def dft(self):
        a = self.a
        X, U = 16, 48
        AF, BF, AC, Z, TW, DA = 128, 16, [44, 60], 76, 112, 240
        XA, BA = 248, 250
        sBase = 50
        a.label("L_dft2")
        srd(a, SA, 36, 448*896)
        srd(a, SB, 38, 448*896)
        srd(a, SW, 48, WS_BYTES)
        srd(a, SD, 46, 256)
        self.ximg_waddr(DX)
        a("v_mov_b32 v12, 0xffff0000")
        a("s_mov_b32 s60, 0x3f803f80")
        a(f"s_min_u32 s51, s{sWV}, 6")
        a(f"s_mul_i32 s{sBase}, s51, 14336"); a(f"s_add_u32 s{sBase}, s{sBase}, {DW}")
        a("s_mul_i32 s52, s51, 28672")
        a(f"s_cmp_eq_u32 s{sWV}, 7"); a(f"s_cselect_b32 s52, {OOB}, s52")
        a("s_add_u32 s53, s52, 896")
        a("s_movk_i32 s54, 2341")
        for i in range(7):
            a(f"v_add_u32 v3, {64*i}, v2")
            a("v_mul_u32_u24 v4, s54, v3")
            a("v_lshrrev_b32 v4, 16, v4")
            a("v_mul_u32_u24 v8, 28, v4")
            a("v_sub_u32 v3, v3, v8")
            a("v_lshrrev_b32 v8, 3, v4")
            a("v_lshlrev_b32 v8, 1, v8")
            a("v_xor_b32 v3, v3, v8")
            a("v_mul_u32_u24 v4, 1792, v4")
            a(f"v_lshl_add_u32 v{DA+i}, v3, 4, v4")
            if i % 4: a(f"v_subrev_u32 v{DA+i}, {1024*(i%4)}, v{DA+i}")
        a(f"s_cmp_eq_u32 s{sWV}, 0"); a(f"s_cselect_b32 s54, {224*896}, 0")
        a("v_cmp_gt_u32 vcc, 28, v2"); a("v_mov_b32 v3, s54"); a("s_nop 0")
        a("v_cndmask_b32 v3, 0, v3, vcc")
        a(f"v_add_u32 v{DA+7}, v3, v{DA}")
        def piece(tile, i):
            srdb = SA if tile % 2 == 0 else SB
            so = 52 if tile < 2 else 53
            va = DA + 7 if (i == 0 and tile < 2) else DA + i
            if i % 4 == 0:
                a(f"s_add_u32 m0, s{sBase}, {(tile % 2)*7168 + 1024*i}")
                a("s_nop 0")
            a(f"buffer_load_dwordx4 v{va}, s[{srdb}:{srdb+3}], s{so} offen offset:{1024*(i%4)} lds")
        def pieces(lst, tag):
            a(f"s_cmp_eq_u32 s{sWV}, 7")
            a(f"s_cbranch_scc1 L_dsk{tag}")
            for t, i in lst: piece(t, i)
            a.label(f"L_dsk{tag}")
        a("v_and_b32 v3, 15, v2"); a("v_lshlrev_b32 v3, 1, v3")
        a("v_lshrrev_b32 v4, 4, v2"); a("v_lshlrev_b32 v4, 2, v4")
        for par in range(2):
            if par: a("v_add_u32 v3, 1, v3")
            a("v_mul_u32_u24 v10, v4, v3")
            a("v_cvt_f32_u32 v11, v3"); a("v_cvt_f32_u32 v10, v10")
            a(f"v_mul_f32 v11, {f32(-1/64)}, v11"); a(f"v_mul_f32 v10, {f32(-1/64)}, v10")
            for q in range(8):
                a("v_fract_f32 v8, v10")
                a(f"v_cos_f32 v{128+q}, v8")
                a(f"v_sin_f32 v{136+q}, v8")
                if q == 3: a(f"v_fmamk_f32 v10, v11, {f32(13.0)}, v10")
                else: a("v_add_f32 v10, v10, v11")
            for i in range(4):
                a(f"v_cvt_pk_bf16_f32 v{TW+8*par+i}, v{128+2*i}, v{129+2*i}")
                a(f"v_cvt_pk_bf16_f32 v{TW+8*par+4+i}, v{136+2*i}, v{137+2*i}")
        a("v_mov_b32 v14, 0"); a("v_mov_b32 v15, 0")
        for k in range(4):
            a(f"s_waitcnt vmcnt({6 - 2*k})")
            for i in range(4):
                x1 = X + 8*k + i; x2 = x1 + 4; u = U + 16*k + 4*i
                a(f"v_dot2_f32_bf16 v14, v{x1}, s60, v14")
                a(f"v_dot2_f32_bf16 v15, v{x1}, v{x1}, v15")
                a(f"v_lshlrev_b32 v3, 16, v{x1}")
                a(f"v_and_b32 v4, v12, v{x1}")
                a(f"v_dot2_f32_bf16 v14, v{x2}, s60, v14")
                a(f"v_dot2_f32_bf16 v15, v{x2}, v{x2}, v15")
                a(f"v_lshlrev_b32 v8, 16, v{x2}")
                a(f"v_and_b32 v10, v12, v{x2}")
                a(f"v_add_f32 v{u}, v3, v8"); a(f"v_add_f32 v{u+1}, v4, v10")
                a(f"v_sub_f32 v{u+2}, v3, v8"); a(f"v_sub_f32 v{u+3}, v4, v10")
        self.stamp(1)
        pieces([(0, i) for i in range(4)], 0)
        self.ln_stats()
        a("v_add_f32 v15, v15, v15")
        for k in range(4):
            for i in range(4):
                u = U + 16*k + 4*i
                a(f"v_fma_f32 v{u}, v{u}, v14, v15"); a(f"v_fma_f32 v{u+1}, v{u+1}, v14, v15")
                a(f"v_mul_f32 v{u+2}, v{u+2}, v14"); a(f"v_mul_f32 v{u+3}, v{u+3}, v14")
                a(f"v_cvt_pk_bf16_f32 v{X+8*k+i}, v{u}, v{u+1}")
                a(f"v_cvt_pk_bf16_f32 v{X+8*k+4+i}, v{u+2}, v{u+3}")
            if k == 3:
                a("s_mov_b32 exec_lo, 0x0f0f0f0f"); a("s_mov_b32 exec_hi, 0x0f0f0f0f")
            a(f"ds_write_b128 v9, {vr(X+8*k)} offset:{k*8192}")
            a(f"ds_write_b128 v9, {vr(X+8*k+4)} offset:{k*8192 + 28672}")
            if k == 3: a("s_mov_b64 exec, -1")
            if k == 1: pieces([(0, i) for i in range(4, 7)], 1)
        self.ximg_raddr(XA, XA+1, DX)
        a("v_bfe_u32 v3, v2, 3, 1"); a("v_lshlrev_b32 v3, 1, v3"); a("v_xor_b32 v3, v3, v11")
        a("v_mul_u32_u24 v4, 448, v8"); a("v_lshl_add_u32 v3, v3, 4, v4")
        a(f"v_add_u32 v{BA}, s{sBase}, v3")
        a("s_waitcnt lgkmcnt(0)")
        a("s_barrier")
        self.stamp(2)
        a(f"s_cmp_eq_u32 s{sWV}, 7")
        a("s_cbranch_scc1 L_dft_end")
        for i in range(7): piece(1, i)
        def ard(par):
            return [f"ds_read_b128 {vr(AF+(k*4+t)*4)}, v{XA+(k%2)} offset:{par*28672 + (k//2)*8192 + t*1024}" for k in range(7) for t in range(4)]
        def zepi(tile):
            s = AC[tile % 2]; o = Z + 8*tile; l = []
            for t in range(2):
                for e in range(0, 4, 2):
                    x = s + 4*t + e; y = x + 8
                    l.append(f"v_add_f32 v3, v{x}, v{y}\nv_add_f32 v4, v{x+1}, v{y+1}")
                    l.append(f"v_sub_f32 v8, v{x}, v{y}\nv_sub_f32 v10, v{x+1}, v{y+1}")
                    l.append(f"v_cvt_pk_bf16_f32 v{o+2*t+e//2}, v3, v4")
                    l.append(f"v_cvt_pk_bf16_f32 v{o+4+2*t+e//2}, v8, v10")
            return l
        for tile in range(4):
            if tile % 2 == 0:
                for n, x in enumerate(ard(tile // 2)):
                    if n >= 12 and n % 4 == 0: a("s_waitcnt lgkmcnt(8)")
                    a(x)
                a("s_waitcnt lgkmcnt(6)")
            a(f"s_waitcnt vmcnt({7 if tile < 3 else 0})")
            for k in range(7):
                a(f"ds_read_b128 {vr(BF+4*k)}, v{BA} offset:{(tile % 2)*7168 + k*64}")
            a("s_waitcnt lgkmcnt(0)")
            if tile < 2:
                for i in range(7): piece(tile + 2, i)
            m = [mfma(AC[tile % 2]+4*t, AF+(k*4+t)*4, BF+4*k, "0" if k == 0 else None) for k in range(7) for t in range(4)]
            weave(a, m, zepi(tile-1) if tile else [], first=2)
        self.stamp(3)
        a(f"v_lshlrev_b32 v5, 2, v2")
        a(f"buffer_load_dword v6, v5, s[{SD}:{SD+3}], 0 offen sc1")
        a("v_and_b32 v3, 7, v2"); a("v_xor_b32 v3, v3, v11"); a("v_lshlrev_b32 v3, 4, v3")
        a("v_and_b32 v4, 15, v2"); a("v_lshl_add_u32 v3, v4, 7, v3")
        a("v_xor_b32 v4, 64, v3")
        a(f"v_add_u32 v9, s{sBase}, v3"); a(f"v_add_u32 v13, s{sBase}, v4")
        a("v_lshrrev_b32 v3, 3, v2"); a("v_and_b32 v4, 7, v2"); a("v_xor_b32 v14, v3, v4")
        a("v_lshlrev_b32 v14, 4, v14"); a("v_lshl_add_u32 v14, v3, 7, v14"); a(f"v_add_u32 v14, s{sBase}, v14")
        a("v_mul_u32_u24 v15, 57344, v3"); a("v_lshl_add_u32 v15, v4, 4, v15")
        a(f"s_lshl_b32 s52, s{sWV}, 12"); a(f"s_lshl_b32 s53, s{sR}, 7"); a("s_add_u32 s52, s52, s53")
        a(f"s_add_u32 s52, s52, {GBASE}")
        a("v_add_u32 v15, s52, v15")
        for x in zepi(3): a(x)
        NB, TX, GA, GP = 128, 144, 160, 16
        a("v_mov_b32 v3, 0x80008000"); a("v_mov_b32 v4, 0x80000000")
        for eo in range(2):
            for i in range(8):
                a(f"v_xor_b32 v{NB+8*eo+i}, v3, v{Z+16*eo+8+i}")
        for i in range(16):
            a(f"v_xor_b32 v{TX+i}, v4, v{TW+i}")
        a("s_nop 1")
        def s1(T):
            par = T >> 1; tw = (TX if T & 1 else TW) + 8*par; g = GA + 16*T; l1 = []; l2 = []
            for eo in range(2):
                za = Z + 16*eo + 4*par; zb = za + 8; nb = NB + 8*eo + 4*par
                l1.append(mfma(g + 4*eo, za, tw, "0")); l2.append(mfma(g + 4*eo, nb, tw+4))
                l1.append(mfma(g + 8 + 4*eo, zb, tw, "0")); l2.append(mfma(g + 8 + 4*eo, za, tw+4))
            return l1 + l2
        def s1epi(T):
            g = GA + 16*T; o = GP + 8*T; l = []
            for part in range(2):
                for e in range(4):
                    l.append(f"v_cvt_pk_bf16_f32 v{o+4*part+e}, v{g+8*part+e}, v{g+8*part+4+e}")
                l.append(f"ds_write_b128 v{13 if part else 9}, {vr(o+4*part)} offset:{T*2048}")
            return l
        for x in s1(0) + s1(1): a(x)
        weave(a, s1(2), s1epi(0), per=2)
        weave(a, s1(3), s1epi(1), per=2)
        for x in s1epi(2) + s1epi(3): a(x)
        a("s_waitcnt lgkmcnt(0)")
        GR = 48
        for n in range(8):
            a(f"ds_read_b128 {vr(GR+4*n)}, v14 offset:{n*1024}")
        for n in range(8):
            T = n >> 1
            a(f"s_mov_b32 s52, {(16*(n&1) + 32*(T&1) + (T>>1))*28672}")
            a(f"s_waitcnt lgkmcnt({7-n})")
            a(f"buffer_store_dwordx4 {vr(GR+4*n)}, v15, s[{SW}:{SW+3}], s52 offen sc1")
        self.stamp(4)
        a(f"s_lshl_b32 s52, s{sWV}, 8"); a(f"s_lshl_b32 s53, s{sR}, 2"); a("s_add_u32 s52, s52, s53"); a("s_add_u32 s52, s52, 128")
        a("v_lshl_add_u32 v3, v2, 11, s52")
        a("v_mov_b32 v4, 1")
        a("s_mov_b32 s54, 0")
        a.label("L_drdy")
        a("s_waitcnt vmcnt(0)")
        a("v_cmp_le_u32 vcc, 7, v6")
        a("s_add_u32 s54, s54, 1")
        a(f"s_cmp_ge_u32 s54, {SPIN}")
        a("s_cbranch_scc1 L_dgo")
        a("s_cmp_eq_u32 vcc_lo, -1")
        a("s_cbranch_scc1 L_dgo")
        a(f"buffer_load_dword v6, v5, s[{SD}:{SD+3}], 0 offen sc1")
        a("s_branch L_drdy")
        a.label("L_dgo")
        a("s_mov_b32 exec_hi, 0")
        a(f"buffer_store_dword v4, v3, s[{SW}:{SW+3}], 0 offen sc1")
        a("s_mov_b64 exec, -1")
        self.stamp(5)
        a.label("L_dft_end")
        self.stamp_out(6)
        a.label("L_end")
        a("s_endpgm")

    def build(self):
        a = self.a
        K = NAME + "_kernel"
        kernel_begin(a, K)
        self.prologue()
        a("s_branch L_compute")
        self.dft_head()
        a.label("L_compute")
        self.compute()
        self.helper()
        self.dft()
        a.raw(".p2align 8")
        a.raw(f".fill {2048}, 4, 0xbf800000")
        hdr = open("cdna_kernels/" + NAME + ".s.ref").read().split("; Override launch")[0]
        return hdr + file_text([f"grid=(256,1,1) block=(512,1,1) lds={LDS_BYTES}"], a.text(), [descriptor(K, 256, 102, 256)])

if __name__ == "__main__":
    import argparse
    ap = argparse.ArgumentParser()
    ap.add_argument("-o", default="k.s"); ap.add_argument("--mapping", type=int, default=4)
    ap.add_argument("--depth", type=int, default=5); ap.add_argument("--stamps", action="store_true")
    r = ap.parse_args()
    t = Gen(r.mapping, r.depth, r.stamps).build()
    open(r.o, "w").write(t)
    print("hazards:", hazcheck.check(t))
```

```python
import re, sys

TRANS = ("v_exp_f32", "v_log_f32", "v_rcp_f32", "v_rsq_f32", "v_sqrt_f32", "v_sin_f32", "v_cos_f32")

def regs(tok):
    tok = tok.strip().lstrip("-")
    tok = re.sub(r"^abs\((.*)\)$", r"\1", tok)
    m = re.fullmatch(r"([vsa])\[(\d+):(\d+)\]", tok)
    if m: return [f"{m.group(1)}{i}" for i in range(int(m.group(2)), int(m.group(3)) + 1)]
    m = re.fullmatch(r"([vsa])(\d+)", tok)
    if m: return [tok]
    if tok in ("vcc", "vcc_lo", "vcc_hi"): return ["vcc"]
    if tok in ("exec_lo", "exec_hi"): return ["exec"]
    if tok in ("exec", "m0"): return [tok]
    return []

class Ins:
    def __init__(self, text, ln):
        self.text = text; self.ln = ln
        p = text.split(None, 1)
        self.op = p[0]
        rest = p[1] if len(p) > 1 else ""
        ops = [o.strip() for o in re.split(r",(?![^\[]*\])", rest)]
        last = ops[-1].split()
        self.mods = last[1:] if last else []
        if last: ops[-1] = last[0]
        self.ops = ops
        self.w = set(); self.r = set(); self.A = self.B = self.C = self.D = []
        op = self.op
        self.states = 1
        self.kind = "other"
        R = lambda i: regs(ops[i]) if i < len(ops) else []
        if op == "s_nop": self.states = int(ops[0], 0) + 1
        elif op.startswith("v_smfmac"):
            self.kind = "mfma"; self.D, self.A, self.B, self.C = R(0), R(1), R(2) + R(3), R(0)
            self.w = set(self.D); self.r = set(self.A + self.B + self.C)
            self.passes = 8
        elif op.startswith("v_mfma"):
            self.kind = "mfma"; self.D, self.A, self.B, self.C = R(0), R(1), R(2), R(3)
            self.w = set(self.D); self.r = set(self.A + self.B + self.C)
            self.passes = 8 if "32x32" in op else 4
        elif op.startswith("v_"):
            self.kind = "valu"
            self.w = set(R(0))
            for i in range(1, len(ops)): self.r |= set(R(i))
            if op.startswith(("v_fmac", "v_dot2c")): self.r |= set(R(0))
            if op.startswith("v_permlane"): self.w |= set(R(1)); self.r |= set(R(0))
            if op.startswith(("v_add_co", "v_sub_co", "v_addc_co")): self.w |= set(R(1)); self.r -= set(R(1)) if not op.startswith("v_addc") else set()
            self.dpp = "dpp" in op or any(m.startswith(("quad_perm", "row_")) for m in self.mods)
        elif op.startswith(("buffer_", "global_")):
            self.kind = "vmem"
            self.lds = "lds" in self.mods or "_lds_" in op
            if "load" in op and not self.lds:
                self.w = set(R(0))
                for i in range(1, len(ops)): self.r |= set(R(i))
            else:
                for i in range(len(ops)): self.r |= set(R(i))
                if "atomic" in op and "sc0" in self.mods: self.w = set(R(0))
            self.data = set()
            if "store" in op and op.endswith(("x3", "x4")):
                self.data = set(R(0)) if op.startswith("buffer") else set(R(1))
            if self.lds: self.r.add("m0")
        elif op.startswith("ds_"):
            self.kind = "ds"
            if "read" in op or "permute" in op or "swizzle" in op:
                self.w = set(R(0))
                for i in range(1, len(ops)): self.r |= set(R(i))
            else:
                for i in range(len(ops)): self.r |= set(R(i))
        elif op.startswith("s_"):
            self.kind = "salu"
            if not op.startswith(("s_cmp", "s_bitcmp", "s_cbranch", "s_branch", "s_waitcnt", "s_barrier", "s_endpgm", "s_setprio", "s_sleep")):
                self.w = set(R(0))
                for i in range(1, len(ops)): self.r |= set(R(i))

def need(p, c):
    n = 0; why = None
    def upd(k, w):
        nonlocal n, why
        if k > n: n = k; why = w
    vw = {x for x in p.w if x[0] in "va" and x != "vcc"}
    sw = {x for x in p.w if x not in vw}
    if p.kind == "valu":
        if c.kind == "mfma" and vw & c.r: upd(2, "valu->mfma")
        if c.kind == "vmem" and sw & c.r: upd(5, "valu sgpr->vmem")
        if c.kind == "valu" and sw & c.r: upd(2, "valu sgpr->valu")
        if c.op.startswith(("v_readfirstlane", "v_readlane")) and vw & c.r: upd(1, "valu->readlane")
        if p.op.replace("_e32", "").replace("_e64", "") in TRANS and c.kind in ("valu",) and vw & c.r: upd(1, "trans->valu")
        if c.kind == "valu" and c.dpp and vw & c.r: upd(2, "valu->dpp")
        if c.op.startswith("v_permlane") and vw & (c.r | c.w): upd(2, "valu->permlane")
        if p.op.startswith("v_dot"):
            if c.op == p.op:
                ab = set(regs(c.ops[1]) + regs(c.ops[2]))
                if vw & ab: upd(3, "dot->dot AB")
            elif vw & (c.r | c.w) and c.kind in ("valu", "vmem", "ds", "mfma"): upd(3, "dot->other")
    if p.kind == "mfma":
        big = {4: 8, 8: 12}[p.passes]; ov = {4: 6, 8: 10}[p.passes]; war = {4: 3, 8: 7}[p.passes]
        if c.kind in ("valu", "vmem", "ds") and vw & (c.r | c.w): upd(big, "mfma D->valu/mem")
        if c.kind == "mfma":
            if vw & set(c.A + c.B): upd(big, "mfma D->mfma AB")
            if vw & set(c.C) and c.C != p.D: upd(ov, "mfma D->mfma C overlap")
        if c.kind == "valu" and set(p.C) & c.w: upd(war, "mfma C WAR")
    if p.kind == "salu" and "m0" in p.w and c.kind == "vmem" and c.lds: upd(1, "m0->lds dma")
    if p.kind == "vmem" and p.data and p.data & c.w: upd(2 if c.kind == "valu" else 1, "store data WAR")
    return n, why

def check(text):
    ins = []; labels = {}
    intext = False
    for ln, l in enumerate(text.split("\n"), 1):
        l = l.split(";")[0].strip()
        if not l: continue
        if l.startswith(".section"): break
        if l.endswith(":"): labels[l[:-1]] = len(ins); continue
        if l.startswith("."): continue
        ins.append(Ins(l, ln))
    preds = [[] for _ in ins]
    for i, x in enumerate(ins):
        if x.op.startswith(("s_branch", "s_cbranch")):
            t = labels[x.ops[0]]
            if t < len(ins): preds[t].append(i)
        if x.op not in ("s_branch", "s_endpgm") and i + 1 < len(ins): preds[i + 1].append(i)
    bad = 0
    for i, c in enumerate(ins):
        stack = [(p, 0) for p in preds[i]]; seen = {}
        while stack:
            p, d = stack.pop()
            if seen.get(p, 99) <= d: continue
            seen[p] = d
            n, why = need(ins[p], c)
            if n > d:
                print(f"HAZARD {why}: need {n} have {d}: line {ins[p].ln} '{ins[p].text}' -> line {c.ln} '{c.text}'"); bad += 1
            d2 = d + ins[p].states
            if d2 < 12:
                for q in preds[p]: stack.append((q, d2))
    return bad

class Tracker:
    def __init__(self):
        self.lds = []; self.vm = []; self.errors = []
    def reset(self):
        self.lds = []; self.vm = []
    def feed(self, text):
        text = text.split(";")[0].strip()
        if not text or text.endswith(":") or text.startswith("."): return
        i = Ins(text, 0)
        if i.op == "s_waitcnt":
            m = re.search(r"lgkmcnt\((\d+)\)", text)
            if m: n = int(m.group(1)); self.lds = self.lds[len(self.lds) - n:] if 0 < n < len(self.lds) else ([] if n == 0 else self.lds)
            m = re.search(r"vmcnt\((\d+)\)", text)
            if m: n = int(m.group(1)); self.vm = self.vm[len(self.vm) - n:] if 0 < n < len(self.vm) else ([] if n == 0 else self.vm)
            return
        touched = i.r | i.w
        for q, name in ((self.lds, "lgkm"), (self.vm, "vm")):
            for e in q:
                if e & touched: self.errors.append(f"missing {name} wait before '{text}' (pending {sorted(e & touched)[:2]})")
        if i.kind == "ds": self.lds.append(set(i.w))
        if i.kind == "vmem": self.vm.append(set(i.w))
    def need(self, q, regs_):
        last = -1
        for n, e in enumerate(q):
            if e & regs_: last = n
        return None if last < 0 else len(q) - 1 - last

if __name__ == "__main__":
    b = check(open(sys.argv[1]).read())
    print("hazards:", b)
```

```python
import sys, struct, math
from asmlib import *
import hazcheck

MBOX = 0xc00000
PBASE = 0x100000
GBASE = 0x1000000
STATS = 0x80000
STAMP = 0x1400000
WS_BYTES = 0x1800000
OOB = 0x7ff00000
XIMG = 98304
OUTT = XIMG
HIMG = 0
SLOTX = XIMG + 8192
GST = XIMG + 40960
LDS_BYTES = 163840
DX = 0
DW = 57344
SX, SA, SB, SW, SO, SD = 8, 12, 16, 20, 24, 28
sR, sJ, sC, sWV, sK = 32, 33, 34, 35, 3
SPIN = 20000
RSL = LDS_BYTES - 256

def slot(pair):
    return SLOTX if pair in (9, 13) else ((pair % 3) if pair < 9 else pair - 10) * 32768

def f32(x):
    return "0x%08x" % struct.unpack("<I", struct.pack("<f", x))[0]

def bf16(x):
    u = struct.unpack("<I", struct.pack("<f", x))[0]
    return ((u + 0x7fff + ((u >> 16) & 1)) >> 16) & 0xffff

def vr(b, n=4):
    return f"v[{b}:{b+n-1}]"

def mfma(d, a, b, c=None):
    cc = vr(d) if c is None else c
    return f"v_mfma_f32_16x16x32_bf16 {vr(d)}, {vr(a)}, {vr(b)}, {cc}"

class Gen:
    def __init__(self, mapping="4", stamps=False, abl=(), opt=None):
        self.tr = hazcheck.Tracker()
        self.a = Asm(self.tr); self.mapping = mapping; self.stamps = stamps; self.abl = set(abl)
        self.opt = dict(prio=1, e9=1, n8=3, n9=3, nk=1, sfirst=11, refl=0, ms=4352, go=0x100080, slp=0, lag=80, w0=110, wp=30)
        self.opt.update(opt or {})

    def tag(self, name):
        self.tr.vm[-1].add(name)
    def wl(self, regs):
        n = self.tr.need(self.tr.lds, set(regs))
        if n is not None: self.a(f"s_waitcnt lgkmcnt({min(n, 15)})")
    def wv(self, regs, lgkm0=False):
        n = self.tr.need(self.tr.vm, set(regs))
        if n is not None and lgkm0: self.a(f"s_waitcnt vmcnt({n}) lgkmcnt(0)")
        elif n is not None: self.a(f"s_waitcnt vmcnt({n})")
        elif lgkm0: self.a("s_waitcnt lgkmcnt(0)")
    def emit(self, item):
        if callable(item): item()
        else: self.a(item)
    def run(self, ms, fills, look=4):
        R = lambda m: hazcheck.Ins(m, 0).r
        for g, m in enumerate(ms):
            if self.tr.need(self.tr.lds, R(m)) is not None:
                regs = set()
                for m2 in ms[g:g+look]: regs |= R(m2)
                self.wl(regs)
            self.a(m)
            for f in fills.get(g, []): self.emit(f)
    @staticmethod
    def spread(fills, items, g0, per=1):
        g = g0; n = 0
        for it in items:
            fills.setdefault(g, []).append(it); n += 1
            if n == per: n = 0; g += 1
        return fills

    def stamp(self, i):
        if self.stamps:
            self.a(f"{'s_memrealtime' if 'rt' in self.abl else 's_memtime'} s[{72+2*i}:{73+2*i}]")

    def bar(self):
        a = self.a
        if "trace" in self.abl:
            a("s_waitcnt lgkmcnt(0)")
            a("s_mov_b32 m0, s100"); a("s_add_u32 s100, s100, 2")
            a("v_writelane_b32 v1, s96, m0"); a("s_add_u32 m0, m0, 1"); a("s_nop 0")
            a("v_writelane_b32 v1, s98, m0")
            a("s_memtime s[96:97]")
            a("s_barrier")
            a("s_memtime s[98:99]")
        else:
            a("s_barrier")

    def stamp_out(self, n):
        if not self.stamps: return
        a = self.a
        a("s_memrealtime s[68:69]")
        a("s_getreg_b32 s67, hwreg(HW_REG_XCC_ID)")
        a("s_waitcnt vmcnt(0) lgkmcnt(0)")
        a("s_lshl_b32 s66, s33, 8"); a("s_or_b32 s67, s67, s66")
        a("s_lshl_b32 s66, s32, 16"); a("s_or_b32 s67, s67, s66")
        a("s_lshl_b32 s66, s34, 24"); a("s_or_b32 s67, s67, s66")
        a("v_mov_b32 v16, s70"); a("v_mov_b32 v17, s68"); a("v_mov_b32 v18, s67")
        for i in range(1, 14):
            if i < n:
                a(f"s_sub_u32 s66, s{72+2*i}, s72"); a(f"v_mov_b32 v{18+i}, s66")
            else:
                a(f"v_mov_b32 v{18+i}, 0")
        a("s_lshl_b32 s66, s2, 3"); a(f"s_add_u32 s66, s66, s{sWV}"); a("s_lshl_b32 s66, s66, 6")
        a(f"s_add_u32 s66, s66, {STAMP}")
        a("s_mov_b64 exec, 1")
        for i in range(4):
            a(f"buffer_store_dwordx4 {vr(16+4*i)}, off, s[{SW}:{SW+3}], s66 offset:{16*i}")
        a("s_mov_b64 exec, -1")
        if "trace" in self.abl:
            a("s_mov_b32 m0, s100"); a("s_add_u32 s100, s100, 2")
            a("v_writelane_b32 v1, s96, m0"); a("s_add_u32 m0, m0, 1"); a("s_nop 0")
            a("v_writelane_b32 v1, s98, m0")
            a("v_subrev_u32 v1, s72, v1")
            a("s_lshl_b32 s66, s2, 3"); a(f"s_add_u32 s66, s66, s{sWV}"); a("s_lshl_b32 s66, s66, 8")
            a(f"s_add_u32 s66, s66, {STAMP + 0x40000}")
            a("v_lshlrev_b32 v3, 2, v2")
            a(f"buffer_store_dword v1, v3, s[{SW}:{SW+3}], s66 offen")

    def prologue(self):
        a = self.a
        if self.stamps:
            a("s_memrealtime s[70:71]")
        self.stamp(0)
        if "trace" in self.abl: a("s_mov_b32 s100, 0")
        a("s_load_dwordx2 s[4:5], s[0:1], 0")
        a("s_load_dwordx4 s[36:39], s[0:1], 24")
        a("s_load_dwordx8 s[40:47], s[0:1], 48")
        a("s_load_dwordx2 s[48:49], s[0:1], 80")
        a("s_cmp_ge_u32 s2, 256")
        a("s_cbranch_scc1 L_end")
        a("s_getpc_b64 s[6:7]")
        a.label("L_pc")
        a("s_bfe_u32 s50, s2, 0x30003")
        a("s_lshl_b32 s50, s50, 12")
        a("v_lshrrev_b32 v1, 6, v0")
        a("v_and_b32 v2, 63, v0")
        a("v_lshl_add_u32 v3, v1, 2, v2")
        a("v_lshl_add_u32 v3, v3, 7, s50")
        a(f"v_readfirstlane_b32 s{sWV}, v1")
        a("s_mov_b64 exec, 15")
        a("global_load_dword v1, v3, s[6:7]")
        a("s_mov_b64 exec, -1")
        if self.mapping.startswith("b"):
            lb = {"b4": 2, "b2": 1}[self.mapping]
            a("s_lshr_b32 s50, s2, 3")
            a(f"s_and_b32 s51, s2, {(1 << lb) - 1}")
            a("s_mul_i32 s52, s51, 28"); a("s_add_u32 s52, s52, s50")
            a(f"s_lshr_b32 s{sJ}, s52, {2+lb}")
            a(f"s_and_b32 s52, s52, {(4 << lb) - 1}")
            a("s_lshl2_add_u32 s51, s51, s50"); a("s_sub_u32 s51, s51, 28")
            a("s_cmp_ge_u32 s50, 28")
            a(f"s_cselect_b32 s{sJ}, 7, s{sJ}")
            a("s_cselect_b32 s50, s51, s52")
            a(f"s_bfe_u32 s51, s2, {hex(((3 - lb) << 16) | lb)}")
            a(f"s_lshl_b32 s{sR}, s50, {3-lb}"); a(f"s_or_b32 s{sR}, s{sR}, s51")
        else:
            m = int(self.mapping); lb = {8: 3, 4: 2, 2: 1, 1: 0}[m]
            a(f"s_and_b32 s{sJ}, s2, {m-1}")
            a(f"s_lshr_b32 s50, s2, {5+lb}")
            a(f"s_lshl_b32 s50, s50, {lb}")
            a(f"s_or_b32 s{sJ}, s{sJ}, s50")
            a(f"s_bfe_u32 s{sR}, s2, {hex((5 << 16) | lb)}")
            a(f"s_lshr_b32 s50, s{sR}, {3-lb}")
        nk = self.opt["nk"]
        if nk == 1: a(f"s_mov_b32 s{sK}, 0")
        elif nk == 2: a("s_and_b32 s51, s50, 1"); a(f"s_mul_i32 s{sK}, s51, 3")
        elif nk == 4: a("s_and_b32 s51, s50, 3"); a(f"s_lshl_b32 s{sK}, s51, 1")
        a(f"s_add_u32 s50, s50, s{sJ}")
        a("s_mul_i32 s51, s50, 37")
        a("s_lshr_b32 s51, s51, 8")
        a("s_mul_i32 s51, s51, 7")
        a(f"s_sub_u32 s{sC}, s50, s51")
        if nk == 7: a(f"s_mov_b32 s{sK}, s{sC}")
        a("v_and_b32 v6, 7, v0")
        a(f"s_mov_b32 s{SX+2}, {2048*896}")
        a(f"s_mov_b32 s{SX+3}, 0x00020000")
        a(f"s_cmp_eq_u32 s{sJ}, 7")
        a("s_cbranch_scc1 L_dft")
        a(f"s_cmp_lt_u32 s{sWV}, 4")
        a("s_cbranch_scc1 L_compute")

    def tile_order(self, a):
        a(f"s_lshl_b32 s52, s{sC}, 7")
        for k in range(1, 7):
            a.lines.append(f"    s_add_u32 s{52+k}, s{51+k}, 128\n    s_cmp_eq_u32 s{52+k}, 896\n    s_cselect_b32 s{52+k}, 0, s{52+k}")

    def ximg_waddr(self):
        a = self.a
        a("v_lshrrev_b32 v8, 2, v6")
        a("v_and_b32 v11, 3, v6")
        a("v_mad_u32_u24 v9, v8, 12, v11")
        a("v_and_b32 v13, 15, v5")
        a("v_xor_b32 v9, v9, v13")
        a("v_lshlrev_b32 v9, 4, v9")
        a("v_lshl_add_u32 v9, v11, 8, v9")
        a("v_lshl_add_u32 v9, v8, 12, v9")
        a("v_lshrrev_b32 v13, 4, v5")
        a("v_lshl_add_u32 v9, v13, 10, v9")

    def ximg_raddr(self, d0, d1, base):
        a = self.a
        a("v_and_b32 v8, 15, v2")
        a("v_lshrrev_b32 v11, 4, v2")
        a(f"v_xor_b32 v{d0}, v8, v11")
        a(f"v_lshlrev_b32 v{d0}, 4, v{d0}")
        a(f"v_lshl_add_u32 v{d0}, v11, 8, v{d0}")
        a(f"v_xor_b32 v{d1}, {12*16}, v{d0}")
        if base: a(f"v_add_u32 v{d0}, {base}, v{d0}")
        a(f"v_add_u32 v{d1}, {base+4096}, v{d1}")

    def ln_stats(self, sets):
        l = []
        for pat in ("quad_perm:[1,0,3,2]", "quad_perm:[2,3,0,1]", "row_half_mirror"):
            for m, s_, q in sets:
                l.append(f"v_add_f32_dpp v{s_}, v{s_}, v{s_} {pat} row_mask:0xf bank_mask:0xf")
                l.append(f"v_add_f32_dpp v{q}, v{q}, v{q} {pat} row_mask:0xf bank_mask:0xf")
            if len(sets) == 1: l.append("s_nop 0")
        for m, s_, q in sets:
            l += [f"v_mul_f32 v{m}, {f32(-1/448)}, v{s_}", f"v_mul_f32 v{q}, {f32(1/448)}, v{q}", f"v_fma_f32 v{q}, -v{m}, v{m}, v{q}",
                  f"v_max_f32 v{q}, 0, v{q}", f"v_add_f32 v{q}, {f32(1e-5)}, v{q}", f"v_rsq_f32 v{s_}, v{q}"]
        return l

    def compute(self):
        a = self.a; sp = self.spread
        WF = [16, 32]; XF = [48, 64]; ACC = 128; AC2 = [48, 64]; HT = 80
        WA, XA, W2, HA, PA, HW, W2X = 112, 120, 122, 124, 125, 126, 127
        CS, XS, SPA, SPI, CA, MB = 192, 200, 208, 212, 216, 224
        FA, FB = 13, 5
        sP, sF = 4, 50
        def HF(k, t): return (192 if k % 2 == 0 else 128) + ((k // 2)*4 + t)*4
        def PK(tau): return 80 + 8*(tau % 4)
        self.tr.reset()
        a("s_waitcnt lgkmcnt(0)")
        srd(a, SW, 48, WS_BYTES)
        a(f"s_cmp_lg_u32 s{sWV}, 0")
        a("s_cbranch_scc1 L_noclean")
        MS, GO = self.opt["ms"], self.opt["go"]
        a(f"s_mul_i32 s64, s{sR}, 7"); a(f"s_add_u32 s64, s64, s{sC}"); a(f"s_mul_i32 s64, s64, {MS}"); a(f"s_add_u32 s64, s64, {MBOX}")
        a(f"v_mul_u32_u24 v3, {GO}, v2")
        a("v_mov_b32 v4, 0")
        a("s_mov_b64 exec, 3")
        a(f"buffer_store_dword v4, v3, s[{SW}:{SW+3}], s64 offen sc1")
        a("s_mov_b64 exec, -1")
        a.label("L_noclean")
        self.tile_order(a)
        a("v_mov_b32 v12, 0xffff0000")
        for i in range(20): a(f"v_mov_b32 v{CS+i}, 0")
        a(f"v_mov_b32 v{SPI}, 0x4444"); a(f"v_mov_b32 v{SPI+1}, 0x4444")
        a("s_mov_b32 exec_lo, 0x11111111"); a("s_mov_b32 exec_hi, 0x22222222")
        for i in range(4): a(f"v_mov_b32 v{SPA+i}, 0x3f803f80")
        a("s_mov_b32 exec_lo, 0xf0f0f0f0"); a("s_mov_b32 exec_hi, 0xf0f0f0f0")
        a(f"v_mov_b32 v{SPI}, 0xeeee")
        a("s_mov_b32 exec_lo, 0xff00ff00"); a("s_mov_b32 exec_hi, 0xff00ff00")
        a(f"v_mov_b32 v{SPI+1}, 0xeeee")
        a("s_mov_b64 exec, -1")
        a("v_lshrrev_b32 v3, 2, v2")
        a("v_lshlrev_b32 v3, 7, v3")
        a("v_and_b32 v4, 3, v2")
        a("v_lshl_add_u32 v3, v4, 3, v3")
        a("v_bfe_u32 v4, v2, 3, 2")
        a("v_lshl_add_u32 v3, v4, 5, v3")
        a(f"s_lshl_b32 s64, s{sWV}, 12")
        a(f"s_lshl_b32 s65, s{sWV}, 5")
        for u in range(4):
            a(f"v_xor_b32 v{WA+u}, {32*u}, v3")
            a(f"v_add_u32 v{WA+u}, s64, v{WA+u}")
            a(f"v_add_u32 v{WA+4+u}, 0x10000, v{WA+u}")
        a(f"v_xor_b32 v{W2}, s65, v3")
        a(f"v_add_u32 v{W2+1}, 0x10000, v{W2}")
        a(f"v_add_u32 v{W2X}, {SLOTX}, v{W2}")
        a("v_and_b32 v8, 15, v2")
        a("v_lshrrev_b32 v4, 4, v2")
        a(f"v_xor_b32 v{XA}, v4, v6")
        a(f"v_lshlrev_b32 v{XA}, 4, v{XA}")
        a(f"v_lshl_add_u32 v{XA}, v8, 7, v{XA}")
        a(f"v_add_u32 v{XA}, {XIMG}, v{XA}")
        a(f"v_xor_b32 v{XA+1}, 64, v{XA}")
        a(f"v_lshlrev_b32 v{HA}, 4, v2")
        a(f"s_lshl_b32 s64, s{sWV}, 13")
        a(f"v_add_u32 v{HW}, s64, v{HA}")
        a(f"s_mul_i32 s64, s{sR}, 344064"); a(f"s_lshl_b32 s65, s{sWV}, 11"); a("s_add_u32 s64, s64, s65")
        a(f"s_add_u32 s64, s64, {PBASE}")
        a(f"v_lshl_add_u32 v{PA}, v2, 4, s64")
        a(f"s_mul_i32 s64, s{sR}, {7*MS}"); a(f"s_add_u32 s64, s64, {MBOX}")
        for t in range(6):
            a(f"s_mul_i32 s{sP+t}, s{53+t}, 384"); a(f"s_add_u32 s{sP+t}, s{sP+t}, {8192*t}")
        for t in range(6):
            a(f"s_mul_i32 s{sF+t}, s{53+t}, {MS//128}"); a(f"s_add_u32 s{sF+t}, s{sF+t}, s64")
        a(f"v_lshlrev_b32 v{FA}, 25, v2")
        a(f"s_lshl_b32 s64, 1, s{sWV}")
        for t in range(6): a(f"v_lshlrev_b32_e64 v{FB+t}, {4*t}, s64")
        a("s_waitcnt vmcnt(0)")

        def ring(pair):
            p = pair % 3
            return (1, 0) if p == 2 else (0, p*32768)
        def wrd(pair, half, u):
            hi, off = ring(pair)
            return [f"ds_read_b64_tr_b16 {vr(WF[half]+4*u+2*h, 2)}, v{WA+4*hi+u} offset:{off + half*16384 + h*2048}" for h in range(2)]
        def xrd(pair, half, t):
            return f"ds_read_b128 {vr(XF[half]+4*t)}, v{XA+half} offset:{pair*8192 + t*2048}"
        def rd_even(p):
            x = [xrd(p, 0, t) for t in range(4)]
            return [x[0]] + wrd(p, 0, 0) + x[1:] + wrd(p, 0, 1) + wrd(p, 0, 2) + wrd(p, 0, 3)
        def rd_odd(p):
            return wrd(p, 1, 0) + wrd(p, 1, 1) + [xrd(p, 1, t) for t in range(4)] + wrd(p, 1, 2) + wrd(p, 1, 3)
        def m1(half, u, t, zero=False):
            return mfma(ACC + (u*4+t)*4, WF[half]+4*u, XF[half]+4*t, "0" if zero else None)
        def smf(half, v):
            return f"v_smfmac_f32_16x16x64_bf16 {vr(CS+4*v)}, {vr(SPA)}, {vr(WF[half]+8*v, 8)}, v{SPI}"
        def mu(half, u, zero=False):
            return [m1(half, u, t, zero) for t in range(4)]
        def smx(half, v):
            return f"v_smfmac_f32_16x16x64_bf16 {vr(XS+4*v)}, {vr(SPA)}, {vr(XF[half]+8*v, 8)}, v{SPI+1}"
        def mm1(half, zero=False):
            return (mu(half, 0, zero) + mu(half, 1, zero) + [smf(half, 0), smx(half, 0)]
                    + mu(half, 2, zero) + mu(half, 3, zero) + [smf(half, 1), smx(half, 1)])
        def csprep(v):
            l = []
            for i in range(2):
                c = CS + 4*v + i; o = CA + 2*(2*v+i)
                l += [f"v_mul_f32 v{c}, {f32(-1/448)}, v{c}", f"v_cvt_pk_bf16_f32 v{o}, v{c}, v{c}", f"v_and_b32 v3, v12, v{o}",
                      f"v_sub_f32 v3, v{c}, v3", f"v_cvt_pk_bf16_f32 v{o}, v{c}, v3", f"v_mov_b32 v{o+1}, v{o}"]
            return l
        def mprep():
            l = []
            for t in range(4):
                c = XS + 4*(t//2) + t%2; o = MB + 2*t
                l += [f"v_cvt_pk_bf16_f32 v{o}, v{c}, v{c}", f"v_and_b32 v3, v12, v{o}", f"v_sub_f32 v3, v{c}, v3", f"v_cvt_pk_bf16_f32 v{o+1}, v3, v3"]
            return l
        def r1(v):
            return [f"v_mfma_f32_16x16x16_bf16 {vr(ACC+(u*4+t)*4)}, {vr(CA+2*u, 2)}, {vr(MB+2*t, 2)}, {vr(ACC+(u*4+t)*4)}"
                    for t in range(4) for u in (2*v, 2*v+1)]
        def w2rd(pair, k):
            sl = slot(pair)
            reg, off = (W2X, 0) if sl == SLOTX else ((W2+1, 0) if sl == 65536 else (W2, sl))
            return [f"ds_read_b64_tr_b16 {vr(WF[k%2]+4*(k//2)+2*h, 2)}, v{reg} offset:{off + k*4096 + h*2048}" for h in range(2)]
        def m2(tau, k):
            return [mfma(AC2[tau % 2]+4*t, WF[k%2]+4*(k//2), HF(k, t), "0" if k == 0 else None) for t in range(4)]
        def mm2(tau, par):
            return [m for k in range(par, 8, 2) for m in m2(tau, k)]
        def hrd(k):
            return [f"ds_read_b128 {vr(HF(k, t))}, v{HA} offset:{k*4096 + t*1024}" for t in range(4)]
        def endpair():
            a("s_waitcnt lgkmcnt(0)"); self.bar()

        self.stamp(1)
        self.bar()
        self.stamp(2)
        for r in rd_even(0): a(r)
        self.bar()
        ro = rd_odd(0)
        for r in ro[:3]: a(r)
        self.run(mm1(0, True), sp({}, ro[3:], 0))
        endpair()
        def reads(p):
            f = sp({}, rd_even(p), 0); sp(f, rd_odd(p)[:4], 13); sp(f, rd_odd(p)[4:], 20)
            return f
        for p in range(1, 6):
            self.run(mm1(1) + mm1(0), reads(p), look=10)
            endpair()
        self.stamp(3)
        def epi(v, t):
            o = HT + 4*(v*4+t); l = []
            for i in range(2):
                s = ACC + ((2*v+i)*4+t)*4
                l.append(f"v_cvt_pk_bf16_f32 v{o+2*i}, v{s}, v{s+1}")
                l.append(f"v_cvt_pk_bf16_f32 v{o+2*i+1}, v{s+2}, v{s+3}")
            for i in range(4):
                l.append(f"v_pk_max_i16 v{o+i}, v{o+i}, 0")
            l.append(f"ds_write_b128 v{HW}, {vr(o)} offset:{v*4096 + t*1024}")
            return l
        ms = (mm1(1) + mu(0, 0) + mu(0, 1) + [smf(0, 0), smx(0, 0), smx(0, 1), smf(1, 0), smx(1, 0), smx(1, 1)]
              + mu(1, 0) + mu(1, 1) + mu(0, 2) + mu(0, 3) + [smf(0, 1), smf(1, 1)]
              + r1(0) + mu(1, 2) + mu(1, 3) + r1(1))
        f = reads(6)
        f.setdefault(35, []).append(endpair)
        sp(f, ["s_nop 3"], 36); sp(f, csprep(0) + mprep(), 37, 2)
        e0 = [x for t in range(4) for x in epi(0, t)]
        sp(f, ["s_nop 1", "s_nop 1"], 56); sp(f, e0[:4], 58, 2); sp(f, csprep(1), 60, 2); sp(f, e0[4:10], 60); sp(f, e0[10:], 66, 3)
        self.run(ms, f, look=3)
        endpair()
        self.stamp(4)
        for r in w2rd(7, 0) + hrd(0) + w2rd(7, 2) + hrd(2): a(r)
        for x in epi(1, 0) + epi(1, 1): a(x)
        rest = w2rd(7, 4) + hrd(4) + w2rd(7, 6) + hrd(6)
        e1 = epi(1, 2) + epi(1, 3)
        f = sp({}, e1, 0, 3); sp(f, rest[:6], 0); sp(f, rest[6:], 6, 3)
        def hb1():
            n = len(self.tr.lds) - 1 - max(i for i, e in enumerate(self.tr.lds) if not e) if any(not e for e in self.tr.lds) else None
            if n is not None: a(f"s_waitcnt lgkmcnt({n})")
            self.bar()
        f.setdefault(9, []).append(hb1)
        odd = [x for k in (1, 3, 5, 7) for x in w2rd(7, k) + hrd(k)]
        sp(f, odd[:18], 10, 3); sp(f, odd[18:], 16, 2)
        f.setdefault(23, []).append(endpair)
        sp(f, [x for k in (0, 2, 4, 6) for x in w2rd(8, k)], 24)
        self.run(mm2(0, 0) + mm2(0, 1), f)
        self.stamp(5)

        def store(tau, p):
            def g():
                a(f"buffer_store_dwordx4 {vr(PK(tau)+4*p)}, v{PA}, s[{SW}:{SW+3}], s{sP+tau} offen offset:{1024*p} sc1")
                self.tag(f"S{tau}")
            return g
        def cvts(tau):
            s = AC2[tau % 2]
            return [f"v_cvt_pk_bf16_f32 v{PK(tau)+i}, v{s+2*i}, v{s+2*i+1}" for i in range(8)]
        def flag(tau):
            def g():
                self.wv([f"S{tau}"])
                a(f"buffer_atomic_or v{FB+tau}, v{FA}, s[{SW}:{SW+3}], s{sF+tau} offen sc1")
                if tau in (0, 5): self.stamp(7 if tau == 0 else 8)
            return g
        g0 = 32*(self.opt["sfirst"] - 9) + 16
        f = {}; ms = []; late = []
        for tau in range(1, 7):
            pair = 7 + tau; b = 32*(tau-1)
            if tau == 1: sp(f, [x for k in (1, 3, 5, 7) for x in w2rd(pair, k)], b)
            else: sp(f, w2rd(pair, 7), b)
            sp(f, cvts(tau-1), b+2, 1 if tau == 1 else 2)
            if tau < 6:
                if tau < 5: f.setdefault(b+15, []).append(endpair)
                sp(f, [x for k in (0, 2, 4, 6) for x in w2rd(pair+1, k)], b+16)
                sp(f, [x for k in (1, 3, 5) for x in w2rd(pair+1, k)], b+24)
            ms += mm2(tau, 0) + mm2(tau, 1)
        for t in range(6):
            g = max(g0 + 4*t, 32*t + (10 if t == 0 else 6))
            f.setdefault(g, []).append(store(t, 0)); f.setdefault(g+2, []).append(store(t, 1))
            g += self.opt["lag"]
            if g < 190: f.setdefault(g, []).append(flag(t))
            else: late.append(flag(t))
        sp(f, [f"s_lshl_b32 s64, s{sWV}, 12", f"v_add_u32 v3, s64, v{HA}"], 172)
        self.run(ms, f, look=8)
        self.stamp(6)
        a("s_nop 4")
        for t in range(4):
            a(f"ds_write_b128 v3, {vr(AC2[0]+4*t)} offset:{t*1024}")
        for g in late: g()
        a("s_waitcnt lgkmcnt(0)")
        self.bar()
        self.stamp_out(9)
        a("s_endpgm")

    def helper(self, part):
        a = self.a
        A1, A2, AX = 112, 116, 126
        TW = 128
        sU, sM0, sOff, sXo, sMX = 50, 51, 59, 60, 61
        sPp, sHh, sMir, sGA, sGB, sNext, sG = 36, 37, 38, 39, 4, 5, 6
        def dma(stage, i):
            def g():
                pair, half = stage // 2, stage % 2
                if i == 0:
                    a(f"s_add_u32 m0, s{sM0}, {slot(pair) + half*16384}")
                    if pair < 7:
                        if half == 0: a(f"s_mul_i32 s{sOff}, s{sXo}, {64*3584//128}")
                        else: a(f"s_add_u32 s{sOff}, s{sOff}, {32*3584}")
                    else:
                        a(f"s_add_u32 s{sOff}, s{52 + (pair-6) % 7}, {half*128*896}")
                if pair < 7: a(f"buffer_load_dwordx4 v{A1+i}, s[{SA}:{SA+3}], s{sOff} offen offset:{1024*i} lds")
                else: a(f"buffer_load_dwordx4 v{A2+i}, s[{SB}:{SB+3}], s{sOff} offen offset:{1024*i} lds")
                self.tag(f"D{stage}")
            return g
        def xdma(p, h):
            def g():
                a(f"s_add_u32 m0, s{sMX}, {XIMG + p*8192 + h*4096}")
                if h == 0 and p > 0:
                    a(f"s_add_u32 s{sXo}, s{sXo}, 128"); a(f"s_cmp_eq_u32 s{sXo}, 896"); a(f"s_cselect_b32 s{sXo}, 0, s{sXo}")
                else: a("s_nop 0")
                a(f"buffer_load_dwordx4 v{AX+h}, s[{SX}:{SX+3}], s{sXo} offen lds")
            return g
        def dmas(*stages):
            l = []
            for s in stages:
                if 1 < s < 14: l.append(xdma(s // 2, s % 2))
                l += [dma(s, i) for i in range(4)]
            return l
        if part == 0:
            self.tr.reset()
            a(f"s_sub_u32 s{sU}, s{sWV}, 4")
            a("v_bfe_u32 v5, v0, 3, 5")
            a(f"v_lshl_add_u32 v7, v5, 6, s{sR}")
            a("v_mul_u32_u24 v7, 896, v7")
            a("v_lshrrev_b32 v8, 3, v2")
            a("v_xor_b32 v8, v8, v6")
            a(f"v_lshl_add_u32 v{AX}, v8, 4, v7")
            a(f"v_add_u32 v{AX+1}, {32*896}, v{AX}")
            a("v_lshrrev_b32 v3, 4, v2")
            a("v_lshlrev_b32 v3, 1, v3")
            a("v_xor_b32 v3, v3, v6")
            a("v_lshlrev_b32 v13, 4, v3")
            a("v_bfe_u32 v4, v2, 3, 2")
            a("v_lshrrev_b32 v8, 5, v2")
            a("v_lshl_add_u32 v4, v8, 3, v4")
            a("v_mul_u32_u24 v4, 3584, v4")
            a(f"s_lshl_b32 s62, s{sJ}, 9"); a(f"s_lshl_b32 s63, s{sU}, 7"); a("s_add_u32 s62, s62, s63")
            a(f"v_add3_u32 v{A1}, v13, v4, s62")
            for i in range(1, 4):
                a(f"v_add_u32 v{A1+i}, {(16*(i&1) + 4*(i>>1))*3584 - 1024*i}, v{A1}")
            a(f"s_lshl_b32 s{sM0}, s{sU}, 12")
            a(f"s_lshl_b32 s{sMX}, s{sU}, 10")
            a(f"s_lshl_b32 s{sXo}, s{sK}, 7")
            a(f"s_mov_b32 s{SA+2}, {448*1792*2}")
            a(f"s_mov_b32 s{SA+3}, 0x00020000")
            a("s_waitcnt lgkmcnt(0)")
            a(f"s_mov_b32 s{SX}, s4")
            a(f"s_and_b32 s{SX+1}, s5, 0xffff")
            a(f"s_mov_b32 s{SA}, s40")
            a(f"s_and_b32 s{SA+1}, s41, 0xffff")
            for d in [xdma(0, 0), xdma(0, 1)] + dmas(0, 1): d()
            a("s_branch L_helper2")
            self.helper_vm = [set(e) for e in self.tr.vm]
            return
        a.label("L_helper2")
        self.tr.lds, self.tr.vm = [], self.helper_vm
        def mix(ds, work, per):
            work = list(work)
            for d in ds:
                d()
                for _ in range(per):
                    if work: self.emit(work.pop(0))
            for w in work: self.emit(w)

        b = Asm()
        self.tile_order(b)
        b("v_mov_b32 v12, 0xffff0000")
        b("v_lshrrev_b32 v4, 3, v2")
        b(f"s_lshl_b32 s62, s{sJ}, 8"); b(f"s_lshl_b32 s63, s{sU}, 5"); b("s_add_u32 s62, s62, s63")
        b("v_add_u32 v4, s62, v4")
        b("v_mul_u32_u24 v4, 896, v4")
        b(f"v_add_u32 v{A2}, v13, v4")
        for i in range(1, 4):
            b(f"v_add_u32 v{A2+i}, {8*896*i - 1024*i}, v{A2}")
        srd(b, SB, 42, 448*1792*2)
        srd(b, SW, 48, WS_BYTES)
        srd(b, SO, 44, 2048*896)
        b(f"s_and_b32 s{sPp}, s{sU}, 1"); b(f"s_lshr_b32 s{sHh}, s{sU}, 1")
        b(f"s_lshl_b32 s64, s{sPp}, 12"); b(f"s_add_u32 s64, s64, {OUTT}"); b(f"s_lshl_b32 s65, s{sHh}, 2")
        b("v_lshrrev_b32 v3, 5, v2"); b("v_add_u32 v3, s65, v3"); b("v_xor_b32 v3, v3, v6")
        b("v_lshlrev_b32 v3, 4, v3"); b("v_bfe_u32 v4, v2, 4, 1"); b("v_lshl_add_u32 v3, v4, 3, v3")
        b("v_and_b32 v4, 15, v2"); b("v_lshl_add_u32 v3, v4, 7, v3")
        b("v_xor_b32 v4, 32, v3"); b("v_add_u32 v109, s64, v3"); b("v_add_u32 v110, s64, v4")
        b(f"s_add_u32 s64, s{sC}, 7"); b(f"s_sub_u32 s64, s64, s{sK}"); b("s_sub_u32 s65, s64, 7")
        b.lines.append("s_cmp_ge_u32 s64, 7\ns_cselect_b32 s64, s65, s64"); b("s_lshl_b32 s64, s64, 13")
        b("v_add_u32 v98, s64, v109"); b("v_add_u32 v99, s64, v110")
        b(f"s_lshl_b32 s62, s{sC}, 1"); b(f"s_add_u32 s62, s62, s{sHh}")
        b(f"s_lshl_b32 s63, s{sPp}, 5"); b(f"s_add_u32 s63, s63, s{sR}")
        b("s_sub_u32 s64, 13, s62"); b("s_sub_u32 s65, 14, s62")
        b.lines.append("s_cmp_eq_u32 s65, 7\ns_cselect_b32 s65, 0, s65")
        b("s_sub_u32 s66, 64, s63"); b("s_and_b32 s66, s66, 63")
        b.lines.append(f"s_cmp_ge_u32 s62, 7\ns_cselect_b32 s{sMir}, 1, 0\ns_cselect_b32 s64, s64, s62\ns_cselect_b32 s65, s65, s62\n"
                       "s_cselect_b32 s66, s66, s63\ns_cselect_b32 s67, -1.0, 1.0")
        b("s_mul_i32 s66, s66, 7")
        b(f"s_add_u32 s{sGA}, s66, s64"); b(f"s_add_u32 s{sGB}, s66, s65")
        b(f"s_lshl_b32 s{sGA}, s{sGA}, 12"); b(f"s_lshl_b32 s{sGB}, s{sGB}, 12")
        b(f"s_add_u32 s{sGA}, s{sGA}, {GBASE}"); b(f"s_add_u32 s{sGB}, s{sGB}, {GBASE}")
        b.lines.append(f"s_cmp_eq_u32 s{sMir}, 1\ns_cselect_b32 s{sGB}, s{sGB}, {OOB}")
        b("v_and_b32 v123, 15, v2"); b("v_lshlrev_b32 v123, 4, v123"); b(f"s_lshl_b32 s7, s{sPp}, 3"); b("v_add_u32 v123, s7, v123")
        MS, GO = self.opt["ms"], self.opt["go"]
        b(f"s_mul_i32 s7, s{sR}, {7*MS}"); b(f"s_add_u32 s7, s7, {MBOX}")
        b(f"s_mul_i32 s40, s{sC}, {MS}"); b("s_add_u32 s40, s40, s7"); b(f"s_add_u32 s7, s7, {GO}")
        b(f"s_mul_i32 s41, s64, {MS}"); b("s_add_u32 s41, s41, s7"); b(f"s_mul_i32 s42, s65, {MS}"); b("s_add_u32 s42, s42, s7")
        b(f"s_lshl_b32 s43, s{sR}, 8"); b(f"s_add_u32 s43, s43, {STATS}")
        b("v_lshlrev_b32 v103, 4, v2")
        b(f"s_mul_i32 s64, s{sR}, 344064"); b(f"s_mul_i32 s65, s{sC}, 49152"); b("s_add_u32 s64, s64, s65")
        b(f"s_lshl_b32 s65, s{sHh}, 12"); b("s_add_u32 s64, s64, s65")
        b(f"s_lshl_b32 s65, s{sPp}, 10"); b("s_add_u32 s64, s64, s65"); b(f"s_add_u32 s64, s64, {PBASE}")
        b("v_add_u32 v102, s64, v103")
        b("v_and_b32 v3, 3, v2"); b("v_cmp_eq_u32 vcc, 0, v3")
        b.lines.append(f"s_cmp_eq_u32 s62, 0\ns_cselect_b32 s64, 1, s{sMir}"); b("s_mul_i32 s64, s64, 0xffff")
        b("v_mov_b32 v3, s64"); b(f"v_mov_b32 v4, {OOB}")
        b("v_cndmask_b32 v104, 0, v3, vcc"); b("v_cndmask_b32 v105, v4, v103, vcc")
        for rt in range(2):
            b("v_and_b32 v3, 15, v2")
            b(f"v_lshl_add_u32 v3, v3, 6, s63")
            if rt: b("v_add_u32 v3, 1024, v3")
            b("v_lshrrev_b32 v4, 4, v2"); b("v_lshlrev_b32 v4, 3, v4")
            b("v_mul_u32_u24 v4, v4, v3")
            b("v_cvt_f32_u32 v3, v3"); b("v_cvt_f32_u32 v4, v4")
            b(f"v_mul_f32 v3, {f32(1/2048)}, v3"); b(f"v_mul_f32 v4, {f32(1/2048)}, v4")
            b("v_mul_f32 v3, s67, v3"); b("v_mul_f32 v4, s67, v4")
            for q in range(8):
                b(f"v_fract_f32 v8, v4")
                b(f"v_cos_f32 v{16+q}, v8")
                b(f"v_sin_f32 v{24+q}, v8")
                b("v_add_f32 v4, v4, v3")
            for i in range(4):
                b(f"v_cvt_pk_bf16_f32 v{TW+4*rt+i}, v{16+2*i}, v{17+2*i}")
                b(f"v_cvt_pk_bf16_f32 v{TW+8+4*rt+i}, v{24+2*i}, v{25+2*i}")
        b(f"s_lshl_b32 s64, s{sU}, 12"); b(f"s_add_u32 s64, s64, {GST}")
        b("v_add_u32 v106, s64, v103")
        b("v_lshrrev_b32 v3, 4, v2"); b("v_bfe_u32 v4, v2, 2, 2"); b("v_lshl_add_u32 v3, v3, 3, v4")
        b("v_and_b32 v4, 3, v2"); b("v_lshlrev_b32 v4, 3, v4"); b("v_lshl_add_u32 v3, v3, 7, v4")
        b("v_add_u32 v107, s64, v3")
        b(f"s_lshl_b32 s64, s{sHh}, 13"); b(f"s_lshl_b32 s65, s{sPp}, 11"); b("s_add_u32 s64, s64, s65")
        b(f"s_add_u32 s64, s64, {HIMG}"); b("v_add_u32 v108, s64, v103")
        b(f"s_lshl_b32 s64, s{sPp}, 12"); b(f"s_add_u32 s64, s64, {OUTT}"); b(f"s_lshl_b32 s65, s{sHh}, 2")
        b("v_and_b32 v3, 3, v2"); b("v_add_u32 v3, s65, v3"); b("v_bfe_u32 v4, v2, 2, 3"); b("v_xor_b32 v4, v3, v4")
        b("v_lshrrev_b32 v8, 2, v2"); b("v_lshlrev_b32 v4, 4, v4"); b("v_lshl_add_u32 v4, v8, 7, v4")
        b("v_add_u32 v111, s64, v4")
        b("v_lshl_add_u32 v8, v8, 6, s63"); b("v_mul_u32_u24 v8, 896, v8"); b("v_lshl_add_u32 v8, v3, 4, v8")
        b(f"s_lshl_b32 s64, s{sC}, 7"); b("v_add_u32 v120, s64, v8")
        b("v_xor_b32 v121, 48, v2"); b("v_add_u32 v122, 16, v121"); b("v_and_b32 v122, 63, v122")
        b("v_lshlrev_b32 v121, 2, v121"); b("v_lshlrev_b32 v122, 2, v122")
        b("s_mov_b32 s62, 0x00003f80"); b("s_mov_b32 s63, 0x3f800000")
        b(f"s_lshl_b32 s64, s{sHh}, 1"); b("s_lshl_b32 s64, 3, s64")
        b(f"s_mov_b32 s{sNext}, 0"); b(f"s_mov_b32 s{sG}, 0"); b("s_mov_b32 s66, 0")
        XR, XU = 192, 200
        for i in range(8):
            b(f"v_lshlrev_b32 v{XU+2*i}, 16, v{XR+i}")
            b(f"v_and_b32 v{XU+2*i+1}, v12, v{XR+i}")
        setup = b.lines
        def work(n):
            nonlocal setup
            w = setup[:n]; setup = setup[n:]
            return w
        mix(dmas(2), [], 0)
        self.stamp(1)
        mix([], work(self.opt['w0']), 0)
        self.wv(["D0"]); self.bar()
        self.stamp(2)
        mix(dmas(3), [], 0)
        a(f"s_cmp_lg_u32 s{sU}, 0")
        a("s_cbranch_scc1 L_noready")
        a(f"s_lshl_b32 s68, s{sR}, 2"); a("s_mov_b32 s69, 1")
        a("s_atomic_add s69, s[46:47], s68")
        a.label("L_noready")
        self.wv(["D1"]); self.bar()
        mix(dmas(4, 5), [], 0)
        self.wv(["D3"]); self.bar()

        tailw = setup[-16:]; setup = setup[:-16]
        for p in range(1, 6):
            mix(dmas(2*p+4, 2*p+5), work(self.opt['wp']), 3)
            self.wv([f"D{2*p+3}"]); self.bar()
        e9, n8, n9 = self.opt["e9"], self.opt["n8"], self.opt["n9"]
        for ct in range(2):
            for rt in range(2):
                a(f"ds_read_b64 {vr(XR+(ct*2+rt)*2, 2)}, v{98+ct} offset:{rt*2048}")
        mix(dmas(16, 17), [], 0)
        a("s_waitcnt lgkmcnt(0)"); self.bar()
        setup += tailw
        mix(dmas(*range(18, 18 + e9)), work(40), 3)
        self.wv(["D15"]); self.bar()
        mix([], work(40), 0)
        a(f"s_lshl_b32 s68, s{sR}, 2")
        a("s_load_dword s69, s[46:47], s68")
        self.bar()
        mix(dmas(*range(18 + e9, 20)), [], 0)
        self.wv(["D17"]); self.bar()
        mix(dmas(*range(20, 20 + n8)), [], 0)
        a.label("L_rdy")
        a("s_waitcnt lgkmcnt(0)")
        a("s_cmp_ge_u32 s69, 7")
        a("s_cbranch_scc1 L_rdy_ok")
        a("s_load_dword s69, s[46:47], s68 glc")
        a("s_add_u32 s66, s66, 1")
        a(f"s_cmp_lt_u32 s66, {SPIN}")
        a("s_cbranch_scc1 L_rdy")
        a.label("L_rdy_ok")
        self.wv(["D19"]); self.bar()
        mix(dmas(*range(20 + n8, 20 + n8 + n9)), work(12), 1)
        self.wv(["D21"]); self.bar()
        mix(dmas(*range(20 + n8 + n9, 28)), work(24), 3)
        self.stamp(3)
        self.wv(["D23"]); self.bar()
        mix([], work(100), 0)
        assert not setup
        def polls():
            for i in range(3): a(f"s_load_dword s{52+i}, s[48:49], s{40+i} glc")
        polls()
        self.wv(["D27"]); self.bar()

        PD, SUM, GD, GP, GF, Y, Y2 = 144, 16, 32, 48, 52, 68, 84
        a("s_branch L_gl_in")
        a.label("L_gl")
        for i in range(1, 3): a(f"s_load_dword s{52+i}, s[48:49], s{40+i} glc")
        a.label("L_gl2")
        a(f"s_load_dword s52, s[48:49], s40 glc")
        a.label("L_gl_in")
        self.tr.reset()
        a("s_add_u32 s66, s66, 1")
        a("s_waitcnt lgkmcnt(0)")
        a(f"s_cmp_ge_u32 s66, {SPIN}")
        a("s_cselect_b32 s52, -1, s52"); a("s_cselect_b32 s53, 32, s53"); a("s_cselect_b32 s54, 32, s54")
        for tau in range(6):
            a(f"s_cmp_gt_u32 s{sNext}, {tau}")
            a(f"s_cbranch_scc1 L_gl_n{tau}")
            a(f"s_lshr_b32 s65, s52, {4*tau}")
            a("s_andn2_b32 s65, s64, s65")
            a("s_cbranch_scc1 L_gl_e")
            a(f"s_mov_b32 s65, {tau*8192}")
            a(f"s_mov_b32 s{sNext}, {tau+1}")
            for ct in range(2):
                a(f"buffer_load_dwordx4 {vr(PD+8*tau+4*ct)}, v102, s[{SW}:{SW+3}], s65 offen offset:{ct*2048} sc1")
            if tau in (0, 5): self.stamp(7 if tau == 0 else 8)
            a.label(f"L_gl_n{tau}")
        a.label("L_gl_e")
        pvm = [set(e) for e in self.tr.vm]
        a(f"s_cmp_lg_u32 s{sG}, 0")
        a("s_cbranch_scc1 L_gl_t")
        a("s_lshr_b32 s65, s52, 19")
        a("s_and_b32 s65, s65, s53"); a("s_and_b32 s65, s65, s54")
        a("s_bitcmp1_b32 s65, 5")
        if "nog" not in self.abl: a("s_cbranch_scc0 L_gl")
        for i in range(4):
            a(f"buffer_load_dwordx4 {vr(GD+4*i)}, v103, s[{SW}:{SW+3}], s{sGA} offen offset:{1024*i} sc1")
        for i in range(4):
            a(f"buffer_load_ushort v{GP+i}, v105, s[{SW}:{SW+3}], s{sGB} offen offset:{1024*i} sc1")
        a(f"buffer_load_dwordx2 v[124:125], v123, s[{SW}:{SW+3}], s43 offen sc1")
        self.stamp(4)
        a("s_waitcnt vmcnt(0)")
        self.stamp(5)
        for i in range(4):
            a(f"v_bfi_b32 v{GD+4*i}, v104, v{GP+i}, v{GD+4*i}")
            a(f"ds_write_b128 v106, {vr(GD+4*i)} offset:{1024*i}")
        for part in range(2):
            for ct in range(2):
                for h in range(2):
                    a(f"ds_read_b64_tr_b16 {vr(GF+(ct*2+part)*4+2*h, 2)}, v107 offset:{h*512 + part*64 + ct*32}")
        self.run([mfma(Y+(ct*2+rt)*4, GF+(ct*2+part)*4, TW+8*part+4*rt, "0" if part == 0 else None)
                  for part in range(2) for ct in range(2) for rt in range(2)], {})
        a(f"s_mov_b32 s{sG}, 1")
        for rt in range(2): a(f"v_mul_f32 v{126+rt}, {f32(-1.4426950408889634)}, v{124+rt}")
        a(f"s_cmp_eq_u32 s{sMir}, 0")
        a("s_cbranch_scc1 L_nomir")
        a("s_nop 4")
        for ct in range(2):
            for rt in range(2):
                a(f"ds_bpermute_b32 v{Y2+(ct*2+rt)*4}, v122, v{Y+(ct*2+rt)*4}")
                for e in range(1, 4):
                    a(f"ds_bpermute_b32 v{Y2+(ct*2+rt)*4+e}, v121, v{Y+((1-ct)*2+rt)*4+4-e}")
        a("s_mov_b64 vcc, 0xffff")
        a("s_waitcnt lgkmcnt(0)")
        for ct in range(2):
            for rt in range(2):
                a(f"v_cndmask_b32 v{Y+(ct*2+rt)*4}, v{Y2+((1-ct)*2+rt)*4}, v{Y2+(ct*2+rt)*4}, vcc")
                for e in range(1, 4):
                    a(f"v_mov_b32 v{Y+(ct*2+rt)*4+e}, v{Y2+(ct*2+rt)*4+e}")
        a.label("L_nomir")
        a("s_nop 4")
        for ct in range(2):
            for rt in range(2):
                for e in (0, 2):
                    i = Y + (ct*2+rt)*4 + e
                    a(f"v_pk_mul_f32 {vr(i,2)}, {vr(i,2)}, v[124:125] op_sel:[0,{rt}] op_sel_hi:[1,{rt}]")
        self.stamp(6)
        a.label("L_gl_t")
        a(f"s_cmp_eq_u32 s{sNext}, 6")
        a("s_cbranch_scc0 L_gl2")
        self.tr.vm = pvm
        self.bar()
        for ct in range(2):
            for rt in range(2):
                a(f"ds_read_b128 {vr(SUM+(ct*2+rt)*4)}, v108 offset:{ct*4096 + rt*1024}")
        a("s_waitcnt lgkmcnt(0)")
        for tau in range(6):
            self.wv([f"v{PD+8*tau+4}"])
            if tau == 5: self.stamp(9)
            order = [(ct, rt) for rt in range(2) for ct in range(2)]
            for ct, rt in order:
                for i in range(2):
                    for h in range(2):
                        d = SUM + (ct*2+rt)*4 + 2*i + h
                        a(f"v_dot2_f32_bf16 v{d}, v{PD+8*tau+4*ct+2*rt+i}, s{62+h}, v{d}")
        T = 52
        a(f"s_mov_b32 s65, {16*64*896}")
        for rt in range(2):
            idx = [(ct*2+rt)*4 + e for ct in range(2) for e in range(4)]
            for i in idx[::2]: a(f"v_pk_mul_f32 {vr(T+i,2)}, {vr(SUM+i,2)}, v[126:127] op_sel:[0,{rt}] op_sel_hi:[1,{rt}]")
            for i in idx: a(f"v_exp_f32 v{T+i}, v{T+i}")
            for i in idx[::2]: a(f"v_pk_mul_f32 {vr(Y+i,2)}, {vr(Y+i,2)}, {vr(SUM+i,2)}")
            for i in idx[::2]: a(f"v_pk_add_f32 {vr(T+i,2)}, {vr(T+i,2)}, 1.0 op_sel_hi:[1,0]")
            for i in idx: a(f"v_rcp_f32 v{T+i}, v{T+i}")
            if rt == 1:
                self.wl([f"v{GD}"])
                a(f"buffer_store_dwordx4 {vr(GD)}, v120, s[{SO}:{SO+3}], 0 offen")
            for i in idx[::2]: a(f"v_pk_fma_f32 {vr(Y+i,2)}, {vr(Y+i,2)}, {vr(T+i,2)}, {vr(XU+i,2)}")
            for ct in range(2):
                n = ct*2 + rt
                for i in range(2): a(f"v_cvt_pk_bf16_f32 v{XR+2*n+i}, v{Y+4*n+2*i}, v{Y+4*n+2*i+1}")
                a(f"ds_write_b64 v{109+ct}, {vr(XR+2*n, 2)} offset:{rt*2048}")
            a(f"ds_read_b128 {vr(GD+4*rt)}, v111 offset:{rt*2048}")
        a("s_waitcnt lgkmcnt(0)")
        a(f"buffer_store_dwordx4 {vr(GD+4)}, v120, s[{SO}:{SO+3}], s65 offen")
        self.stamp(10)
        self.stamp_out(11)
        a("s_endpgm")

    def dft_head(self):
        a = self.a
        a.label("L_dft")
        self.tr.reset()
        a("v_lshrrev_b32 v5, 3, v0")
        a(f"v_lshl_add_u32 v7, v5, 5, s{sR}")
        a("v_mul_u32_u24 v7, 896, v7")
        a("v_lshl_add_u32 v7, v6, 4, v7")
        a("v_lshrrev_b32 v8, 2, v6")
        a("v_lshl_or_b32 v8, v8, 30, v7")
        a("s_waitcnt lgkmcnt(0)")
        a(f"s_mov_b32 s{SX}, s4")
        a(f"s_and_b32 s{SX+1}, s5, 0xffff")
        for k in range(4):
            for h in range(2):
                a(f"buffer_load_dwordx4 {vr(128+8*k+4*h)}, v{8 if k == 3 else 7}, s[{SX}:{SX+3}], 0 offen offset:{128*k + 448*h}")
        a("s_branch L_dft2")
        self.dft_after_x = [set(e) for e in self.tr.vm]

    def dft(self):
        a = self.a; sp = self.spread
        DXR, DU = 128, 160
        AF, BF, AC, Z, TW = [16, 32], [48, 56], 64, 128, 224
        XA, BA, DA = 248, 250, 251
        sBase = 50
        a.label("L_dft2")
        self.tr.lds, self.tr.vm = [], self.dft_after_x
        srd(a, SA, 36, 448*896)
        srd(a, SB, 38, 448*896)
        a(f"s_mul_i32 s{sBase}, s{sWV}, 14336"); a(f"s_add_u32 s{sBase}, s{sBase}, {DW}")
        a(f"s_mul_i32 s52, s{sWV}, 28672")
        a(f"s_cmp_eq_u32 s{sWV}, 7"); a(f"s_cselect_b32 s52, {OOB}, s52")
        a("s_add_u32 s53, s52, 896")
        a("v_lshrrev_b32 v3, 5, v2"); a("v_lshlrev_b32 v3, 1, v3"); a("v_and_b32 v4, 3, v2"); a("v_xor_b32 v3, v3, v4")
        a("v_lshrrev_b32 v4, 2, v2"); a("v_mul_u32_u24 v4, 1792, v4")
        a(f"v_lshl_add_u32 v{DA+1}, v3, 4, v4")
        a("v_cmp_gt_u32 vcc, 4, v0"); a(f"v_mov_b32 v3, {224*896}"); a("s_nop 0")
        a("v_cndmask_b32 v3, 0, v3, vcc")
        a(f"v_add_u32 v{DA}, v3, v{DA+1}")
        def piece(par, k, im):
            def g():
                srdb = SB if im else SA
                a(f"s_add_u32 m0, s{sBase}, {k*2048 + im*1024 - 64*k}")
                a("s_nop 0")
                a(f"buffer_load_dwordx4 v{DA+par}, s[{srdb}:{srdb+3}], s{52+par} offen offset:{64*k} lds")
                self.tag(f"W{par*7+k}")
            return g
        first = [piece(0, k, im) for kk in range(0, 8, 2) for im in range(2) for k in (kk, kk+1) if k < 7]
        for _ in range(4): first.pop(0)()
        srd(a, SW, 48, WS_BYTES)
        srd(a, SD, 46, 256)
        a("v_mov_b32 v12, 0xffff0000")
        a("v_mov_b32 v14, 0"); a("v_mov_b32 v15, 0")
        a("v_bfe_u32 v3, v5, 1, 4"); a("v_and_b32 v4, 1, v5"); a("v_lshl_add_u32 v3, v3, 1, v4")
        a("v_lshrrev_b32 v4, 5, v5"); a("v_lshl_add_u32 v3, v3, 1, v4"); a("v_lshlrev_b32 v3, 2, v3")
        a(f"v_add_u32 v253, {RSL}, v3")
        self.ximg_waddr()
        self.ximg_raddr(XA, XA+1, DX)
        a("v_bfe_u32 v3, v2, 3, 1"); a("v_lshlrev_b32 v3, 1, v3"); a("v_xor_b32 v3, v3, v11")
        a("v_lshlrev_b32 v3, 4, v3"); a("v_lshl_add_u32 v3, v8, 6, v3")
        a(f"v_add_u32 v{BA}, s{sBase}, v3")
        for k in range(4):
            self.wv([f"v{DXR+8*k+4}"])
            for i in range(4):
                x1 = DXR + 8*k + i; x2 = x1 + 4; u = DU + 16*k + 4*i
                a(f"v_dot2_f32_bf16 v15, v{x1}, v{x1}, v15")
                a(f"v_lshlrev_b32 v3, 16, v{x1}")
                a(f"v_and_b32 v4, v12, v{x1}")
                a(f"v_dot2_f32_bf16 v15, v{x2}, v{x2}, v15")
                a(f"v_lshlrev_b32 v10, 16, v{x2}")
                a(f"v_and_b32 v13, v12, v{x2}")
                a(f"v_add_f32 v{u}, v3, v10"); a(f"v_add_f32 v{u+1}, v4, v13")
                a(f"v_sub_f32 v{u+2}, v3, v10"); a(f"v_sub_f32 v{u+3}, v4, v13")
                a(f"v_add_f32 v14, v14, v{u}"); a(f"v_add_f32 v14, v14, v{u+1}")
        self.stamp(1)
        a("s_nop 1")
        for x in self.ln_stats([(13, 14, 15)]): a(x)
        a("v_add_f32 v13, v13, v13")
        a("v_mul_f32 v15, v13, v14")
        def fold(par):
            l = []
            for k in range(4):
                for i in range(4):
                    u = DU + 16*k + 4*i + 2*par
                    if par == 0: l += [f"v_fma_f32 v{u}, v{u}, v14, v15", f"v_fma_f32 v{u+1}, v{u+1}, v14, v15"]
                    else: l += [f"v_mul_f32 v{u}, v{u}, v14\nv_mul_f32 v{u+1}, v{u+1}, v14"]
                    l.append(f"v_cvt_pk_bf16_f32 v{DXR+8*k+4*par+i}, v{u}, v{u+1}")
                w = f"ds_write_b128 v9, {vr(DXR+8*k+4*par)} offset:{k*8192 + par*28672}"
                if k == 3: w = "s_mov_b64 exec, s[54:55]\n" + w + "\ns_mov_b64 exec, -1"
                l.append(w)
            return l
        a("s_mov_b32 s54, 0x0f0f0f0f"); a("s_mov_b32 s55, 0x0f0f0f0f")
        a("ds_write_b32 v253, v14")
        for x in fold(0) + fold(1): a(x)
        a(f"s_cmp_eq_u32 s{sWV}, 7")
        a("s_cbranch_scc1 L_dft_w7")
        a("s_waitcnt lgkmcnt(0)")
        self.bar()
        self.stamp(2)
        for g in first[:4]: g()
        if self.opt["prio"]:
            a(f"s_cmp_ge_u32 s{sWV}, 4"); a("s_cbranch_scc1 L_dft_lo"); a("s_setprio 2"); a.label("L_dft_lo")
        def rds(n):
            par, k = n // 7, n % 7; s = n % 2
            l = [(lambda: self.wv([f"W{n}"]))]
            A = [f"ds_read_b128 {vr(AF[s]+4*t)}, v{XA+(k%2)} offset:{par*28672 + (k//2)*8192 + t*1024}" for t in range(4)]
            B = [f"ds_read_b128 {vr(BF[s]+4*im)}, v{BA} offset:{k*2048 + im*1024}" for im in range(2)]
            return A[:2] + l + [B[0], A[2], A[3], B[1]]
        def mms(n):
            par, k = n // 7, n % 7; s = n % 2
            return [mfma(AC + 32*par + 16*im + 4*t, AF[s]+4*t, BF[s]+4*im, "0" if k == 0 else None) for im in range(2) for t in range(4)]
        def zepi(tile):
            s = AC + 16*tile; o = Z + 8*tile; l = []
            for t in range(2):
                for e in range(0, 4, 2):
                    x = s + 4*t + e; y = x + 8
                    l.append(f"v_add_f32 v3, v{x}, v{y}\nv_add_f32 v4, v{x+1}, v{y+1}")
                    l.append(f"v_sub_f32 v10, v{x}, v{y}\nv_sub_f32 v13, v{x+1}, v{y+1}")
                    l.append(f"v_cvt_pk_bf16_f32 v{o+2*t+e//2}, v3, v4")
                    l.append(f"v_cvt_pk_bf16_f32 v{o+4+2*t+e//2}, v10, v13")
            return l
        def table():
            a("s_add_u32 s6, s6, L_tab-L_pc"); a("s_addc_u32 s7, s7, 0")
            a("v_lshlrev_b32 v5, 4, v2")
            for i in range(4): a(f"global_load_dwordx4 {vr(TW+4*i)}, v5, s[6:7] offset:{1024*i}")
        addr = Asm()
        addr("v_and_b32 v5, 7, v2"); addr("v_xor_b32 v5, v5, v11"); addr("v_lshlrev_b32 v5, 4, v5")
        addr("v_lshl_add_u32 v5, v8, 7, v5"); addr("v_xor_b32 v6, 64, v5")
        addr(f"v_add_u32 v9, s{sBase}, v5"); addr(f"v_add_u32 v7, s{sBase}, v6")
        addr("v_lshrrev_b32 v5, 3, v2"); addr("v_and_b32 v6, 7, v2"); addr("v_xor_b32 v14, v5, v6")
        addr("v_lshlrev_b32 v14, 4, v14"); addr("v_lshl_add_u32 v14, v5, 7, v14"); addr(f"v_add_u32 v14, s{sBase}, v14")
        addr("v_mul_u32_u24 v15, 57344, v5"); addr("v_lshl_add_u32 v15, v6, 4, v15")
        addr(f"s_lshl_b32 s56, s{sWV}, 12"); addr(f"s_lshl_b32 s57, s{sR}, 7"); addr("s_add_u32 s56, s56, s57")
        addr(f"s_add_u32 s56, s56, {GBASE}")
        addr("v_add_u32 v15, s56, v15")
        addr("v_lshlrev_b32 v5, 2, v2")
        for x in rds(0): self.emit(x)
        for g in first[4:]: g()
        ms = []; f = {}
        for n in range(14):
            ms += mms(n)
            if n < 13: sp(f, rds(n+1), 8*n)
            if n in (1, 3, 5):
                for i, (k, im) in enumerate([(n-1, 0), (n, 0), (n-1, 1), (n, 1)]): f.setdefault(8*n + 4*(i//2), []).append(piece(1, k, im))
            if n == 6: f.setdefault(8*n, []).append(piece(1, n, 0)); f.setdefault(8*n+4, []).append(piece(1, n, 1))
        sp(f, addr.lines, 26)
        f.setdefault(55, []).insert(0, table)
        sp(f, zepi(0) + zepi(1), 62)
        f.setdefault(104, []).append("v_lshlrev_b32 v5, 2, v2")
        f.setdefault(106, []).append(f"buffer_load_dword v6, v5, s[{SD}:{SD+3}], 0 offen sc1")
        self.run(ms, f, look=8)
        self.stamp(3)
        NB, TX, GA, GP = 16, 32, 160, 64
        a("v_mov_b32 v48, 0x80008000"); a("v_mov_b32 v49, 0x80000000")
        self.wv([f"v{TW+12}"])
        for i in range(16):
            a(f"v_xor_b32 v{TX+i}, v49, v{TW+i}")
        for x in zepi(2) + zepi(3): a(x)
        for eo in range(2):
            for i in range(8):
                a(f"v_xor_b32 v{NB+8*eo+i}, v48, v{Z+16*eo+8+i}")
        def s1(T):
            par = T >> 1; tw = (TX if T & 1 else TW) + 8*par; g = GA + 16*T; l1 = []; l2 = []
            for eo in range(2):
                za = Z + 16*eo + 4*par; zb = za + 8; nb = NB + 8*eo + 4*par
                l1.append(mfma(g + 4*eo, za, tw, "0")); l2.append(mfma(g + 4*eo, nb, tw+4))
                l1.append(mfma(g + 8 + 4*eo, zb, tw, "0")); l2.append(mfma(g + 8 + 4*eo, za, tw+4))
            return l1 + l2
        GR = 96
        def s1epi(T):
            g = GA + 16*T; o = GP + 8*T; l = []
            for part in range(2):
                for e in range(4):
                    l.append(f"v_cvt_pk_bf16_f32 v{o+4*part+e}, v{g+8*part+e}, v{g+8*part+4+e}")
                l.append(f"ds_write_b128 v{7 if part else 9}, {vr(o+4*part)} offset:{T*2048}")
            for n in (2*T, 2*T+1):
                l.append(f"ds_read_b128 {vr(GR+4*n)}, v14 offset:{n*1024}")
            return l
        def gstore(n):
            def g():
                T = n >> 1
                a(f"s_mov_b32 s56, {(16*(n&1) + 32*(T&1) + (T>>1))*28672}")
                self.wl([f"v{GR+4*n}"])
                a(f"buffer_store_dwordx4 {vr(GR+4*n)}, v15, s[{SW}:{SW+3}], s56 offen sc1")
            return g
        f = sp({}, s1epi(0), 15, 2); sp(f, s1epi(1), 22, 2); sp(f, [gstore(0), gstore(1)], 30)
        self.run(s1(0) + s1(1) + s1(2) + s1(3), f)
        for x in s1epi(2) + [gstore(2), gstore(3)] + s1epi(3) + [gstore(n) for n in range(4, 8)]: self.emit(x)
        self.stamp(4)
        MS, GO = self.opt["ms"], self.opt["go"]
        a(f"s_mul_i32 s56, s{sWV}, {MS}"); a(f"s_add_u32 s56, s56, {MBOX + GO}")
        a(f"v_mul_u32_u24 v3, {7*MS}, v2"); a("v_add_u32 v3, s56, v3")
        a("v_mov_b32 v4, 1")
        a("s_mov_b32 s54, 0")
        a.label("L_drdy")
        a("s_waitcnt vmcnt(0)")
        a("v_cmp_le_u32 vcc, 7, v6")
        a("s_add_u32 s54, s54, 1")
        a(f"s_cmp_ge_u32 s54, {SPIN}")
        a("s_cbranch_scc1 L_dgo")
        a("s_cmp_eq_u32 vcc_lo, -1")
        a("s_cbranch_scc1 L_dgo")
        a(f"buffer_load_dword v6, v5, s[{SD}:{SD+3}], 0 offen sc1")
        a("s_branch L_drdy")
        a.label("L_dgo")
        self.tr.reset()
        a("s_mov_b32 exec_hi, 0")
        a(f"buffer_atomic_add v4, v3, s[{SW}:{SW+3}], 0 offen sc1")
        a("s_mov_b64 exec, -1")
        self.stamp(5)
        a("s_branch L_dft_end")
        a.label("L_dft_w7")
        a("s_waitcnt lgkmcnt(0)"); self.bar()
        a("v_lshlrev_b32 v5, 2, v2")
        a(f"v_add_u32 v3, {RSL}, v5")
        a("ds_read_b32 v4, v3")
        a(f"s_lshl_b32 s56, s{sR}, 8"); a(f"s_add_u32 s56, s56, {STATS}")
        a(f"s_lshl_b32 s57, s{sR}, 2"); a(f"s_mul_i32 s58, s{sR}, {7*MS}"); a(f"s_add_u32 s58, s58, {MBOX}")
        a("s_waitcnt lgkmcnt(0)")
        a(f"buffer_store_dword v4, v5, s[{SW}:{SW+3}], s56 offen sc1")
        a(f"v_mul_u32_u24 v3, {MS}, v2"); a("v_mov_b32 v6, 0x1000000")
        a("s_mov_b32 s54, 0")
        a.label("L_w7rdy")
        a("s_load_dword s55, s[46:47], s57 glc")
        a("s_add_u32 s54, s54, 1")
        a("s_waitcnt vmcnt(0) lgkmcnt(0)")
        a(f"s_cmp_ge_u32 s54, {SPIN}")
        a("s_cbranch_scc1 L_w7go")
        a("s_cmp_ge_u32 s55, 7")
        a("s_cbranch_scc0 L_w7rdy")
        a.label("L_w7go")
        a("s_mov_b64 exec, 0x7f")
        a(f"buffer_atomic_or v6, v3, s[{SW}:{SW+3}], s58 offen sc1")
        a("s_mov_b64 exec, -1")
        a.label("L_dft_end")
        self.stamp_out(6)
        a.label("L_end")
        a("s_endpgm")

    def table(self):
        a = self.a
        a.raw(".p2align 8")
        a.raw(".type L_tab,@object")
        a.label("L_tab")
        for par in range(2):
            for fn in (math.cos, math.sin):
                for lane in range(64):
                    t0 = 2*(lane & 15) + par; g = lane >> 4
                    v = [bf16(fn(-2*math.pi*(((16*(q >> 2) + 4*g + (q & 3))*t0) % 64)/64)) for q in range(8)]
                    a.raw(".long " + ", ".join("0x%08x" % (v[2*i] | (v[2*i+1] << 16)) for i in range(4)))
        a.raw(".size L_tab, 4096")

    def build(self):
        a = self.a
        K = NAME + "_kernel"
        kernel_begin(a, K)
        self.prologue()
        self.helper(0)
        self.dft_head()
        a.raw(".p2align 3")
        a.label("L_compute")
        self.compute()
        self.helper(1)
        self.dft()
        self.table()
        a.raw(f".fill {2048}, 4, 0xbf800000")
        hdr = open("cdna_kernels/" + NAME + ".s.ref").read().split("; Override launch")[0]
        return hdr + file_text([f"grid=(256,1,1) block=(512,1,1) lds={LDS_BYTES}"], a.text(), [descriptor(K, 256, 102, 256)])

if __name__ == "__main__":
    import argparse, subprocess
    ap = argparse.ArgumentParser()
    ap.add_argument("-o", default="k.s"); ap.add_argument("--mapping", default="4")
    ap.add_argument("--abl", default=""); ap.add_argument("--stamps", action="store_true"); ap.add_argument("--opt", default="")
    r = ap.parse_args()
    opt = {k: int(v) for k, v in (x.split("=") for x in r.opt.split(",") if x)}
    g = Gen(r.mapping, r.stamps, [x for x in r.abl.split(',') if x], opt)
    t = g.build()
    open(r.o, "w").write(t)
    rc = subprocess.run(["clang", "-x", "assembler", "-target", "amdgcn-amd-amdhsa", "-mcpu=gfx950", "-c", r.o, "-o", r.o + ".o"], capture_output=True, text=True)
    for e in g.tr.errors[:20]: print("WAIT:", e)
    print(r.o, "hazards:", hazcheck.check(t), "waits:", len(g.tr.errors), "asm:", "ok" if rc.returncode == 0 else rc.stderr[:2000])
```

```python
import sys, struct, math
from asmlib import *
import hazcheck

MBOX = 0xc00000
PBASE = 0x100000
GBASE = 0x1000000
C0BASE = 0x40000
STATS = 0x80000
STAMP = 0x1400000
WS_BYTES = 0x1800000
OOB = 0x7ff00000
XIMG = 98304
HIMG = 0
GST = XIMG
OWN = XIMG + 16384
OUTT = XIMG + 32768
LDS_BYTES = 163840
DX = 0
DW = 57344
SX, SA, SB, SW, SO, SD = 8, 12, 16, 20, 24, 28
sR, sJ, sC, sWV, sK = 32, 33, 34, 35, 3
SPIN = 20000
RSL = LDS_BYTES - 256

def slot(pair):
    return 32768 * (pair % 3 if pair < 9 else {9: 3, 10: 4, 11: 1, 12: 0, 13: 2}[pair])

def f32(x):
    return "0x%08x" % struct.unpack("<I", struct.pack("<f", x))[0]

def bf16(x):
    u = struct.unpack("<I", struct.pack("<f", x))[0]
    return ((u + 0x7fff + ((u >> 16) & 1)) >> 16) & 0xffff

def vr(b, n=4):
    return f"v[{b}:{b+n-1}]"

def mfma(d, a, b, c=None):
    cc = vr(d) if c is None else c
    return f"v_mfma_f32_16x16x32_bf16 {vr(d)}, {vr(a)}, {vr(b)}, {cc}"

SCRIPTS = [
    "W3 L0 L1 P A0 L2 P A1 L3 P A2 LG A3 L4 L5 PG F A4 A5",
    "LG PG W3 L0 L1 P A0 L2 P A1 L3 P A2 L4 P A3 L5 F A4 A5",
    "W4 L0 L1 P A0 L2 P A1 L3 P A2 LG A3 L4 L5 PG F A4 A5",
    "W2 L0 L1 P A0 L2 P A1 L3 P A2 LG A3 L4 L5 PG F A4 A5",
    "W3 L0 L1 L2 P A0 L3 P A1 LG A2 L4 A3 L5 PG F A4 A5",
    "LG PG W4 L0 L1 L2 P A0 L3 A1 L4 A2 L5 F A3 A4 A5",
    "LG PG W5 L0 L1 L2 L3 L4 L5 F A0 A1 A2 A3 A4 A5",
    "LG PG L0 L1 P A0 L2 P A1 L3 P A2 L4 P A3 L5 F A4 A5",
    "G5 L0 L1 L2 L3 L4 L5 PG F A0 A1 A2 A3 A4 A5",
    "G4 P L0 L1 L2 L3 L4 L5 PG F A0 A1 A2 A3 A4 A5",
    "G3 P L0 L1 L2 L3 L4 L5 PG F A0 A1 A2 A3 A4 A5",
    "G3 W4 L0 L1 L2 L3 L4 L5 PG F A0 A1 A2 A3 A4 A5",
    "G3 W5 L0 L1 L2 L3 L4 L5 PG F A0 A1 A2 A3 A4 A5",
    "G2 PG W5 L0 L1 L2 L3 L4 L5 F A0 A1 A2 A3 A4 A5",
]

class Gen:
    def __init__(self, mapping="4", stamps=False, abl=(), opt=None):
        self.tr = hazcheck.Tracker()
        self.a = Asm(self.tr); self.mapping = mapping; self.stamps = stamps; self.abl = set(abl)
        self.opt = dict(prio=1, e9=2, wx=40, wd=35, nw=1, nh=2, n8=2, n9=3, lastb=12, gs=6, dk=0, xb=44, of=0, c0=1, nk=2, sfirst=10, refl=1, ms=4352, go=0x100080, slp=0, lag=80, w0=110, wp=30, kj=0, xf=0, wf=0, xa=0)
        self.opt.update(opt or {})

    def tag(self, name):
        self.tr.vm[-1].add(name)
    def wl(self, regs):
        n = self.tr.need(self.tr.lds, set(regs))
        if n is not None: self.a(f"s_waitcnt lgkmcnt({min(n, 15)})")
    def wv(self, regs, lgkm0=False):
        n = self.tr.need(self.tr.vm, set(regs))
        if n is not None and lgkm0: self.a(f"s_waitcnt vmcnt({n}) lgkmcnt(0)")
        elif n is not None: self.a(f"s_waitcnt vmcnt({n})")
        elif lgkm0: self.a("s_waitcnt lgkmcnt(0)")
    def emit(self, item):
        if callable(item): item()
        else: self.a(item)
    def run(self, ms, fills, look=4):
        R = lambda m: hazcheck.Ins(m, 0).r
        for g, m in enumerate(ms):
            if self.tr.need(self.tr.lds, R(m)) is not None:
                regs = set()
                for m2 in ms[g:g+look]: regs |= R(m2)
                self.wl(regs)
            self.a(m)
            for f in fills.get(g, []): self.emit(f)
    @staticmethod
    def spread(fills, items, g0, per=1):
        g = g0; n = 0
        for it in items:
            fills.setdefault(g, []).append(it); n += 1
            if n == per: n = 0; g += 1
        return fills

    def stamp(self, i):
        if self.stamps:
            self.a(f"{'s_memrealtime' if 'rt' in self.abl else 's_memtime'} s[{72+2*i}:{73+2*i}]")

    def bar(self):
        a = self.a
        if "trace" in self.abl:
            a("s_waitcnt lgkmcnt(0)")
            a("s_mov_b32 m0, s100"); a("s_add_u32 s100, s100, 2")
            a("v_writelane_b32 v1, s96, m0"); a("s_add_u32 m0, m0, 1"); a("s_nop 0")
            a("v_writelane_b32 v1, s98, m0")
            a("s_memtime s[96:97]")
            a("s_barrier")
            a("s_memtime s[98:99]")
        else:
            a("s_barrier")

    def stamp_out(self, n):
        if not self.stamps: return
        a = self.a
        a("s_memrealtime s[68:69]")
        a("s_getreg_b32 s67, hwreg(HW_REG_XCC_ID)")
        a("s_waitcnt vmcnt(0) lgkmcnt(0)")
        a("s_lshl_b32 s66, s33, 8"); a("s_or_b32 s67, s67, s66")
        a("s_lshl_b32 s66, s32, 16"); a("s_or_b32 s67, s67, s66")
        a("s_lshl_b32 s66, s34, 24"); a("s_or_b32 s67, s67, s66")
        a("v_mov_b32 v16, s70"); a("v_mov_b32 v17, s68"); a("v_mov_b32 v18, s67")
        for i in range(1, 14):
            if i < n:
                a(f"s_sub_u32 s66, s{72+2*i}, s72"); a(f"v_mov_b32 v{18+i}, s66")
            else:
                a(f"v_mov_b32 v{18+i}, 0")
        a("s_lshl_b32 s66, s2, 3"); a(f"s_add_u32 s66, s66, s{sWV}"); a("s_lshl_b32 s66, s66, 6")
        a(f"s_add_u32 s66, s66, {STAMP}")
        a("s_mov_b64 exec, 1")
        for i in range(4):
            a(f"buffer_store_dwordx4 {vr(16+4*i)}, off, s[{SW}:{SW+3}], s66 offset:{16*i}")
        a("s_mov_b64 exec, -1")
        if "trace" in self.abl:
            a("s_mov_b32 m0, s100"); a("s_add_u32 s100, s100, 2")
            a("v_writelane_b32 v1, s96, m0"); a("s_add_u32 m0, m0, 1"); a("s_nop 0")
            a("v_writelane_b32 v1, s98, m0")
            a("v_subrev_u32 v1, s72, v1")
            a("s_lshl_b32 s66, s2, 3"); a(f"s_add_u32 s66, s66, s{sWV}"); a("s_lshl_b32 s66, s66, 8")
            a(f"s_add_u32 s66, s66, {STAMP + 0x40000}")
            a("v_lshlrev_b32 v3, 2, v2")
            a(f"buffer_store_dword v1, v3, s[{SW}:{SW+3}], s66 offen")

    def prologue(self):
        a = self.a
        if self.stamps:
            a("s_memrealtime s[70:71]")
        self.stamp(0)
        if "trace" in self.abl: a("s_mov_b32 s100, 0")
        a("s_load_dwordx2 s[4:5], s[0:1], 0")
        a("s_load_dwordx8 s[40:47], s[0:1], 48")
        a("s_load_dwordx2 s[48:49], s[0:1], 80")
        a("s_cmp_ge_u32 s2, 256")
        a("s_cbranch_scc1 L_end")
        a("s_getpc_b64 s[6:7]")
        a.label("L_pc")
        a("s_bfe_u32 s50, s2, 0x30003")
        a("s_lshl_b32 s50, s50, 12")
        a("v_lshrrev_b32 v1, 6, v0")
        a("v_and_b32 v2, 63, v0")
        a("v_lshl_add_u32 v3, v1, 2, v2")
        a("v_lshl_add_u32 v3, v3, 7, s50")
        a(f"v_readfirstlane_b32 s{sWV}, v1")
        a("s_mov_b64 exec, 15")
        a("global_load_dword v1, v3, s[6:7]")
        a("s_mov_b64 exec, -1")
        if self.mapping.startswith("b"):
            lb = {"b4": 2, "b2": 1}[self.mapping]
            a("s_lshr_b32 s50, s2, 3")
            a(f"s_and_b32 s51, s2, {(1 << lb) - 1}")
            a("s_mul_i32 s52, s51, 28"); a("s_add_u32 s52, s52, s50")
            a(f"s_lshr_b32 s{sJ}, s52, {2+lb}")
            a(f"s_and_b32 s52, s52, {(4 << lb) - 1}")
            a("s_lshl2_add_u32 s51, s51, s50"); a("s_sub_u32 s51, s51, 28")
            a("s_cmp_ge_u32 s50, 28")
            a(f"s_cselect_b32 s{sJ}, 7, s{sJ}")
            a("s_cselect_b32 s50, s51, s52")
            a(f"s_bfe_u32 s51, s2, {hex(((3 - lb) << 16) | lb)}")
            a(f"s_lshl_b32 s{sR}, s50, {3-lb}"); a(f"s_or_b32 s{sR}, s{sR}, s51")
        else:
            m = int(self.mapping); lb = {8: 3, 4: 2, 2: 1, 1: 0}[m]
            a(f"s_and_b32 s{sJ}, s2, {m-1}")
            a(f"s_lshr_b32 s50, s2, {5+lb}")
            a(f"s_lshl_b32 s50, s50, {lb}")
            a(f"s_or_b32 s{sJ}, s{sJ}, s50")
            a(f"s_bfe_u32 s{sR}, s2, {hex((5 << 16) | lb)}")
            a(f"s_lshr_b32 s50, s{sR}, {3-lb}")
        nk = self.opt["nk"]
        if self.opt["kj"]: nk = 0; a(f"s_min_u32 s{sK}, s{sJ}, 6")
        if nk == 1: a(f"s_mov_b32 s{sK}, 0")
        elif nk == 2: a("s_and_b32 s51, s50, 1"); a(f"s_mul_i32 s{sK}, s51, 3")
        elif nk == 4: a("s_and_b32 s51, s50, 3"); a(f"s_lshl_b32 s{sK}, s51, 1")
        if self.opt["refl"]:
            a(f"s_sub_u32 s50, 32, s{sR}"); a(f"s_min_u32 s50, s50, s{sR}"); a("s_lshr_b32 s50, s50, 1")
        a(f"s_add_u32 s50, s50, s{sJ}")
        a("s_mul_i32 s51, s50, 37")
        a("s_lshr_b32 s51, s51, 8")
        a("s_mul_i32 s51, s51, 7")
        a(f"s_sub_u32 s{sC}, s50, s51")
        if self.opt["refl"]:
            a(f"s_sub_u32 s51, 6, s{sC}"); a(f"s_cmp_gt_u32 s{sR}, 16"); a(f"s_cselect_b32 s{sC}, s51, s{sC}")
        if nk == 7: a(f"s_mov_b32 s{sK}, s{sC}")
        a("v_and_b32 v6, 7, v0")
        a(f"s_mov_b32 s{SX+2}, {2048*896}")
        a(f"s_mov_b32 s{SX+3}, 0x00020000")
        a(f"s_cmp_eq_u32 s{sJ}, 7")
        a("s_cbranch_scc1 L_dft")
        a(f"s_cmp_lt_u32 s{sWV}, 4")
        a("s_cbranch_scc1 L_compute")

    def tile_order(self, a):
        a(f"s_lshl_b32 s52, s{sC}, 7")
        for k in range(1, 7):
            a.lines.append(f"    s_add_u32 s{52+k}, s{51+k}, 128\n    s_cmp_eq_u32 s{52+k}, 896\n    s_cselect_b32 s{52+k}, 0, s{52+k}")

    def ximg_waddr(self):
        a = self.a
        a("v_lshrrev_b32 v8, 2, v6")
        a("v_and_b32 v11, 3, v6")
        a("v_mad_u32_u24 v9, v8, 12, v11")
        a("v_and_b32 v13, 15, v5")
        a("v_xor_b32 v9, v9, v13")
        a("v_lshlrev_b32 v9, 4, v9")
        a("v_lshl_add_u32 v9, v11, 8, v9")
        a("v_lshl_add_u32 v9, v8, 12, v9")
        a("v_lshrrev_b32 v13, 4, v5")
        a("v_lshl_add_u32 v9, v13, 10, v9")

    def ximg_raddr(self, d0, d1, base):
        a = self.a
        a("v_and_b32 v8, 15, v2")
        a("v_lshrrev_b32 v11, 4, v2")
        a(f"v_xor_b32 v{d0}, v8, v11")
        a(f"v_lshlrev_b32 v{d0}, 4, v{d0}")
        a(f"v_lshl_add_u32 v{d0}, v11, 8, v{d0}")
        a(f"v_xor_b32 v{d1}, {12*16}, v{d0}")
        if base: a(f"v_add_u32 v{d0}, {base}, v{d0}")
        a(f"v_add_u32 v{d1}, {base+4096}, v{d1}")

    def ln_stats(self, sets):
        l = []
        for pat in ("quad_perm:[1,0,3,2]", "quad_perm:[2,3,0,1]", "row_half_mirror"):
            for m, s_, q in sets:
                l.append(f"v_add_f32_dpp v{s_}, v{s_}, v{s_} {pat} row_mask:0xf bank_mask:0xf")
                l.append(f"v_add_f32_dpp v{q}, v{q}, v{q} {pat} row_mask:0xf bank_mask:0xf")
            if len(sets) == 1: l.append("s_nop 0")
        for m, s_, q in sets:
            l += [f"v_mul_f32 v{m}, {f32(-1/448)}, v{s_}", f"v_mul_f32 v{q}, {f32(1/448)}, v{q}", f"v_fma_f32 v{q}, -v{m}, v{m}, v{q}",
                  f"v_max_f32 v{q}, 0, v{q}", f"v_add_f32 v{q}, {f32(1e-5)}, v{q}", f"v_rsq_f32 v{s_}, v{q}"]
        return l

    def compute(self):
        a = self.a; sp = self.spread
        WF = [16, 32]; XF = [48, 64]; ACC = 128; AC2 = [48, 64]; HT = 80
        WA, XA, W2, HA, PA, HW, W2X = 112, 120, 122, 124, 125, 126, 127
        CS, XS, SPA, SPI, CA, MB = 192, 200, 208, 212, 216, 224
        FA, FB = 13, 5
        sP, sF = 4, 50
        def HF(k, t): return (192 if k % 2 == 0 else 128) + ((k // 2)*4 + t)*4
        def PK(tau): return 80 + 8*(tau % 4)
        self.tr.reset()
        a("s_waitcnt lgkmcnt(0)")
        srd(a, SW, 48, WS_BYTES)
        a(f"s_cmp_lg_u32 s{sWV}, 0")
        a("s_cbranch_scc1 L_noclean")
        MS, GO = self.opt["ms"], self.opt["go"]
        a(f"s_mul_i32 s64, s{sR}, 7"); a(f"s_add_u32 s64, s64, s{sC}"); a(f"s_mul_i32 s64, s64, {MS}"); a(f"s_add_u32 s64, s64, {MBOX}")
        a(f"v_mul_u32_u24 v3, {GO}, v2")
        a("v_mov_b32 v4, 0")
        a("s_mov_b64 exec, 3")
        a(f"buffer_store_dword v4, v3, s[{SW}:{SW+3}], s64 offen sc1")
        a("s_mov_b64 exec, -1")
        a.label("L_noclean")
        self.tile_order(a)
        a("v_mov_b32 v12, 0xffff0000")
        for i in range(20): a(f"v_mov_b32 v{CS+i}, 0")
        a(f"v_mov_b32 v{SPI}, 0x4444"); a(f"v_mov_b32 v{SPI+1}, 0x4444")
        a("s_mov_b32 exec_lo, 0x11111111"); a("s_mov_b32 exec_hi, 0x22222222")
        for i in range(4): a(f"v_mov_b32 v{SPA+i}, 0x3f803f80")
        a("s_mov_b32 exec_lo, 0xf0f0f0f0"); a("s_mov_b32 exec_hi, 0xf0f0f0f0")
        a(f"v_mov_b32 v{SPI}, 0xeeee")
        a("s_mov_b32 exec_lo, 0xff00ff00"); a("s_mov_b32 exec_hi, 0xff00ff00")
        a(f"v_mov_b32 v{SPI+1}, 0xeeee")
        a("s_mov_b64 exec, -1")
        a("v_lshrrev_b32 v3, 2, v2")
        a("v_lshlrev_b32 v3, 7, v3")
        a("v_and_b32 v4, 3, v2")
        a("v_lshl_add_u32 v3, v4, 3, v3")
        a("v_bfe_u32 v4, v2, 3, 2")
        a("v_lshl_add_u32 v3, v4, 5, v3")
        a(f"s_lshl_b32 s64, s{sWV}, 12")
        a(f"s_lshl_b32 s65, s{sWV}, 5")
        for u in range(4):
            a(f"v_xor_b32 v{WA+u}, {32*u}, v3")
            a(f"v_add_u32 v{WA+u}, s64, v{WA+u}")
            a(f"v_add_u32 v{WA+4+u}, 0x10000, v{WA+u}")
        a(f"v_xor_b32 v{W2}, s65, v3")
        a(f"v_add_u32 v{W2+1}, 0x10000, v{W2}")
        a(f"v_add_u32 v{W2X}, 0x20000, v{W2}")
        a("v_and_b32 v8, 15, v2")
        a("v_lshrrev_b32 v4, 4, v2")
        a(f"v_xor_b32 v{XA}, v4, v6")
        a(f"v_lshlrev_b32 v{XA}, 4, v{XA}")
        a(f"v_lshl_add_u32 v{XA}, v8, 7, v{XA}")
        a(f"v_add_u32 v{XA}, {XIMG}, v{XA}")
        a(f"v_xor_b32 v{XA+1}, 64, v{XA}")
        a(f"v_lshlrev_b32 v{HA}, 4, v2")
        a(f"s_lshl_b32 s64, s{sWV}, 13")
        a(f"v_add_u32 v{HW}, s64, v{HA}")
        a(f"s_mul_i32 s64, s{sR}, 344064"); a(f"s_lshl_b32 s65, s{sWV}, 11"); a("s_add_u32 s64, s64, s65")
        a(f"s_add_u32 s64, s64, {PBASE}")
        a(f"v_lshl_add_u32 v{PA}, v2, 4, s64")
        a(f"s_mul_i32 s64, s{sR}, {7*MS}"); a(f"s_add_u32 s64, s64, {MBOX}")
        for t in range(6):
            a(f"s_mul_i32 s{sP+t}, s{53+t}, 384"); a(f"s_add_u32 s{sP+t}, s{sP+t}, {8192*t}")
        for t in range(6):
            a(f"s_mul_i32 s{sF+t}, s{53+t}, {MS//128}"); a(f"s_add_u32 s{sF+t}, s{sF+t}, s64")
        a(f"v_lshlrev_b32 v{FA}, 25, v2")
        a(f"s_lshl_b32 s64, 1, s{sWV}")
        for t in range(6): a(f"v_lshlrev_b32_e64 v{FB+t}, {4*t}, s64")
        a("s_waitcnt vmcnt(0)")

        def ring(pair):
            p = pair % 3
            return (1, 0) if p == 2 else (0, p*32768)
        def wrd(pair, half, u):
            hi, off = ring(pair)
            return [f"ds_read_b64_tr_b16 {vr(WF[half]+4*u+2*h, 2)}, v{WA+4*hi+u} offset:{off + half*16384 + h*2048}" for h in range(2)]
        def xrd(pair, half, t):
            return f"ds_read_b128 {vr(XF[half]+4*t)}, v{XA+half} offset:{pair*8192 + t*2048}"
        def rd_even(p):
            x = [xrd(p, 0, t) for t in range(4)]
            return [x[0]] + wrd(p, 0, 0) + x[1:] + wrd(p, 0, 1) + wrd(p, 0, 2) + wrd(p, 0, 3)
        def rd_odd(p):
            return wrd(p, 1, 0) + wrd(p, 1, 1) + [xrd(p, 1, t) for t in range(4)] + wrd(p, 1, 2) + wrd(p, 1, 3)
        def m1(half, u, t, zero=False):
            return mfma(ACC + (u*4+t)*4, WF[half]+4*u, XF[half]+4*t, "0" if zero else None)
        def smf(half, v):
            return f"v_smfmac_f32_16x16x64_bf16 {vr(CS+4*v)}, {vr(SPA)}, {vr(WF[half]+8*v, 8)}, v{SPI}"
        def mu(half, u, zero=False):
            return [m1(half, u, t, zero) for t in range(4)]
        def smx(half, v):
            return f"v_smfmac_f32_16x16x64_bf16 {vr(XS+4*v)}, {vr(SPA)}, {vr(XF[half]+8*v, 8)}, v{SPI+1}"
        def mm1(half, zero=False):
            return (mu(half, 0, zero) + mu(half, 1, zero) + [smf(half, 0), smx(half, 0)]
                    + mu(half, 2, zero) + mu(half, 3, zero) + [smf(half, 1), smx(half, 1)])
        def csprep(v):
            l = []
            for i in range(2):
                c = CS + 4*v + i; o = CA + 2*(2*v+i)
                l += [f"v_mul_f32 v{c}, {f32(-1/448)}, v{c}", f"v_cvt_pk_bf16_f32 v{o}, v{c}, v{c}", f"v_and_b32 v3, v12, v{o}",
                      f"v_sub_f32 v3, v{c}, v3", f"v_cvt_pk_bf16_f32 v{o}, v{c}, v3", f"v_mov_b32 v{o+1}, v{o}"]
            return l
        def mprep():
            l = []
            for t in range(4):
                c = XS + 4*(t//2) + t%2; o = MB + 2*t
                l += [f"v_cvt_pk_bf16_f32 v{o}, v{c}, v{c}", f"v_and_b32 v3, v12, v{o}", f"v_sub_f32 v3, v{c}, v3", f"v_cvt_pk_bf16_f32 v{o+1}, v3, v3"]
            return l
        def r1(v):
            return [f"v_mfma_f32_16x16x16_bf16 {vr(ACC+(u*4+t)*4)}, {vr(CA+2*u, 2)}, {vr(MB+2*t, 2)}, {vr(ACC+(u*4+t)*4)}"
                    for t in range(4) for u in (2*v, 2*v+1)]
        def w2rd(pair, k):
            sl = slot(pair)
            reg, off = [W2, W2+1, W2X][sl >> 16], sl & 0xffff
            return [f"ds_read_b64_tr_b16 {vr(WF[k%2]+4*(k//2)+2*h, 2)}, v{reg} offset:{off + k*4096 + h*2048}" for h in range(2)]
        def m2(tau, k):
            return [mfma(AC2[tau % 2]+4*t, WF[k%2]+4*(k//2), HF(k, t), "0" if k == 0 else None) for t in range(4)]
        def mm2(tau, par):
            return [m for k in range(par, 8, 2) for m in m2(tau, k)]
        def hrd(k):
            return [f"ds_read_b128 {vr(HF(k, t))}, v{HA} offset:{k*4096 + t*1024}" for t in range(4)]
        def endpair():
            a("s_waitcnt lgkmcnt(0)"); self.bar()

        self.stamp(1)
        self.bar()
        self.stamp(2)
        for r in rd_even(0): a(r)
        self.bar()
        ro = rd_odd(0)
        for r in ro[:3]: a(r)
        self.run(mm1(0, True), sp({}, ro[3:], 0))
        endpair()
        def reads(p):
            f = sp({}, rd_even(p), 0); sp(f, rd_odd(p)[:4], 13); sp(f, rd_odd(p)[4:], 20)
            return f
        for p in range(1, 6):
            self.run(mm1(1) + mm1(0), reads(p), look=10)
            endpair()
        self.stamp(3)
        def epi(v, t):
            o = HT + 4*(v*4+t); l = []
            for i in range(2):
                s = ACC + ((2*v+i)*4+t)*4
                l.append(f"v_cvt_pk_bf16_f32 v{o+2*i}, v{s}, v{s+1}")
                l.append(f"v_cvt_pk_bf16_f32 v{o+2*i+1}, v{s+2}, v{s+3}")
            for i in range(4):
                l.append(f"v_pk_max_i16 v{o+i}, v{o+i}, 0")
            return l
        ms = (mm1(1) + mu(0, 0) + mu(0, 1) + [smf(0, 0), smx(0, 0), smx(0, 1), smf(1, 0), smx(1, 0), smx(1, 1)]
              + mu(1, 0) + mu(1, 1) + mu(0, 2) + mu(0, 3) + [smf(0, 1), smf(1, 1)]
              + r1(0) + mu(1, 2) + mu(1, 3) + r1(1))
        f = reads(6)
        f.setdefault(self.opt["xb"], []).append(endpair)
        sp(f, ["s_nop 2", "s_nop 2"], 35); sp(f, csprep(0) + mprep(), 37, 2)
        e0 = [x for t in range(4) for x in epi(0, t)]
        sp(f, [x for k in (0, 2, 4, 6, 1, 3) for x in w2rd(7, k)], 51); sp(f, w2rd(7, 5) + w2rd(7, 7), 68)
        sp(f, e0[:3], 57); sp(f, csprep(1)[:3], 60); sp(f, csprep(1)[3:], 63, 3); sp(f, e0[3:7], 66, 2); sp(f, e0[7:23], 68, 2)
        self.run(ms, f, look=3)
        for x in e0[23:] + [x for t in range(4) for x in epi(1, t)]: a(x)
        self.bar()
        self.stamp(4)
        for v in range(2):
            for t in range(4): a(f"ds_write_b128 v{HW}, {vr(HT + 4*(v*4+t))} offset:{v*4096 + t*1024}")
        endpair()
        hr = [x for k in (0, 2, 4, 6, 1, 3, 5, 7) for x in hrd(k)]
        for r in hr[:10]: a(r)
        f = sp({}, hr[10:], 0); sp(f, [x for k in (0, 2, 4, 6) for x in w2rd(8, k)], 22)
        f.setdefault(31, []).append(self.bar)
        self.run(mm2(0, 0) + mm2(0, 1), f)
        self.stamp(5)

        def store(tau, p):
            def g():
                a(f"buffer_store_dwordx4 {vr(PK(tau)+4*p)}, v{PA}, s[{SW}:{SW+3}], s{sP+tau} offen offset:{1024*p} sc1")
                self.tag(f"S{tau}")
            return g
        def cvts(tau):
            s = AC2[tau % 2]
            return [f"v_cvt_pk_bf16_f32 v{PK(tau)+i}, v{s+2*i}, v{s+2*i+1}" for i in range(8)]
        def flag(tau):
            def g():
                self.wv([f"S{tau}"])
                a(f"buffer_atomic_or v{FB+tau}, v{FA}, s[{SW}:{SW+3}], s{sF+tau} offen sc1")
                if tau in (0, 5): self.stamp(7 if tau == 0 else 8)
            return g
        g0 = 32*(self.opt["sfirst"] - 9) + 16
        f = {}; ms = []; late = []
        for tau in range(1, 7):
            pair = 7 + tau; b = 32*(tau-1)
            if tau == 1: sp(f, [x for k in (1, 3, 5, 7) for x in w2rd(pair, k)], b)
            else: sp(f, w2rd(pair, 7), b)
            sp(f, cvts(tau-1), b+2, 1 if tau == 1 else 2)
            if tau < 6:
                if tau < self.opt["lastb"] - 7: f.setdefault(b+15, []).append(endpair)
                sp(f, [x for k in (0, 2, 4, 6) for x in w2rd(pair+1, k)], b+16)
                sp(f, [x for k in (1, 3, 5) for x in w2rd(pair+1, k)], b+24)
            ms += mm2(tau, 0) + mm2(tau, 1)
        for t in range(6):
            g = max(g0 + 4*t, 32*t + (10 if t == 0 else 6))
            f.setdefault(g, []).append(store(t, 0)); f.setdefault(g+2, []).append(store(t, 1))
            g += self.opt["lag"]
            if g < 190: f.setdefault(g, []).append(flag(t))
            else: late.append(flag(t))
        sp(f, [f"s_lshl_b32 s64, s{sWV}, 12", f"s_add_u32 s64, s64, {OWN}", f"v_add_u32 v3, s64, v{HA}"], 172)
        self.run(ms, f, look=8)
        self.stamp(6)
        a("s_nop 4")
        for t in range(4):
            a(f"ds_write_b128 v3, {vr(AC2[0]+4*t)} offset:{t*1024}")
        for g in late: g()
        a("s_waitcnt lgkmcnt(0)")
        self.bar()
        self.stamp_out(9)
        a("s_endpgm")

    def helper(self, part):
        a = self.a
        A1, A2, AX = 112, 116, 126
        TW = 128
        sU, sM0, sOff, sXo, sMX = 50, 51, 59, 60, 61
        sPp, sHh, sMir, sGA, sGB, sNext, sG = 36, 37, 38, 39, 4, 5, 6
        def dma(stage, i):
            def g():
                pair, half = stage // 2, stage % 2
                if i == 0:
                    a(f"s_add_u32 m0, s{sM0}, {slot(pair) + half*16384}")
                    if pair < 7:
                        if half == 0: a(f"s_mul_i32 s{sOff}, s{sXo}, {64*3584//128}")
                        else: a(f"s_add_u32 s{sOff}, s{sOff}, {32*3584}")
                    else:
                        a(f"s_add_u32 s{sOff}, s{52 + (pair-6) % 7}, {half*128*896}")
                if pair < 7: a(f"buffer_load_dwordx4 v{A1+i}, s[{SA}:{SA+3}], s{sOff} offen offset:{1024*i} {['', 'nt', 'sc1'][self.opt['wf']]} lds")
                else: a(f"buffer_load_dwordx4 v{A2+i}, s[{SB}:{SB+3}], s{sOff} offen offset:{1024*i} lds")
                self.tag(f"D{stage}")
            return g
        def xdma(p, h):
            def g():
                a(f"s_add_u32 m0, s{sMX}, {XIMG + p*8192 + h*4096}")
                if h == 0 and p > 0:
                    a(f"s_add_u32 s{sXo}, s{sXo}, 128"); a(f"s_cmp_eq_u32 s{sXo}, 896"); a(f"s_cselect_b32 s{sXo}, 0, s{sXo}")
                else: a("s_nop 0")
                a(f"buffer_load_dwordx4 v{AX+h}, s[{SX}:{SX+3}], s{sXo} offen {['', 'nt', 'sc1'][self.opt['xf']]} lds")
            return g
        def dmas(*stages):
            l = []
            for s in stages:
                if 1 < s < 14: l.append(xdma(s // 2, s % 2))
                l += [dma(s, i) for i in range(4)]
            return l
        if part == 0:
            self.tr.reset()
            a(f"s_sub_u32 s{sU}, s{sWV}, 4")
            a("v_bfe_u32 v5, v0, 3, 5")
            a(f"v_lshl_add_u32 v7, v5, 6, s{sR}")
            a("v_mul_u32_u24 v7, 896, v7")
            a("v_lshrrev_b32 v8, 3, v2")
            a("v_xor_b32 v8, v8, v6")
            a(f"v_lshl_add_u32 v{AX}, v8, 4, v7")
            a(f"v_add_u32 v{AX+1}, {32*896}, v{AX}")
            a("v_lshrrev_b32 v3, 4, v2")
            a("v_lshlrev_b32 v3, 1, v3")
            a("v_xor_b32 v3, v3, v6")
            a("v_lshlrev_b32 v13, 4, v3")
            a("v_bfe_u32 v4, v2, 3, 2")
            a("v_lshrrev_b32 v8, 5, v2")
            a("v_lshl_add_u32 v4, v8, 3, v4")
            a("v_mul_u32_u24 v4, 3584, v4")
            a(f"s_lshl_b32 s62, s{sJ}, 9"); a(f"s_lshl_b32 s63, s{sU}, 7"); a("s_add_u32 s62, s62, s63")
            a(f"v_add3_u32 v{A1}, v13, v4, s62")
            for i in range(1, 4):
                a(f"v_add_u32 v{A1+i}, {(16*(i&1) + 4*(i>>1))*3584 - 1024*i}, v{A1}")
            a(f"s_lshl_b32 s{sM0}, s{sU}, 12")
            a(f"s_lshl_b32 s{sMX}, s{sU}, 10")
            a(f"s_lshl_b32 s{sXo}, s{sK}, 7")
            a(f"s_mov_b32 s{SA+2}, {448*1792*2}")
            a(f"s_mov_b32 s{SA+3}, 0x00020000")
            a("s_waitcnt lgkmcnt(0)")
            a(f"s_mov_b32 s{SX}, s4")
            a(f"s_and_b32 s{SX+1}, s5, 0xffff")
            a(f"s_mov_b32 s{SA}, s40")
            a(f"s_and_b32 s{SA+1}, s41, 0xffff")
            for d in [xdma(0, 0), xdma(0, 1)] + dmas(0, 1): d()
            a("s_branch L_helper2")
            self.helper_vm = [set(e) for e in self.tr.vm]
            return
        a.label("L_helper2")
        self.tr.lds, self.tr.vm = [], self.helper_vm
        def mix(ds, work, per):
            work = list(work)
            for d in ds:
                d()
                for _ in range(per):
                    if work: self.emit(work.pop(0))
            for w in work: self.emit(w)

        b = Asm()
        self.tile_order(b)
        b("v_mov_b32 v12, 0xffff0000")
        b("v_lshrrev_b32 v4, 3, v2")
        b(f"s_lshl_b32 s62, s{sJ}, 8"); b(f"s_lshl_b32 s63, s{sU}, 5"); b("s_add_u32 s62, s62, s63")
        b("v_add_u32 v4, s62, v4")
        b("v_mul_u32_u24 v4, 896, v4")
        b(f"v_add_u32 v{A2}, v13, v4")
        for i in range(1, 4):
            b(f"v_add_u32 v{A2+i}, {8*896*i - 1024*i}, v{A2}")
        srd(b, SB, 42, 448*1792*2)
        srd(b, SW, 48, WS_BYTES)
        srd(b, SO, 44, 2048*896)
        b(f"s_and_b32 s{sPp}, s{sU}, 1"); b(f"s_lshr_b32 s{sHh}, s{sU}, 1")
        b(f"s_lshl_b32 s64, s{sPp}, 12"); b(f"s_add_u32 s64, s64, {OUTT}"); b(f"s_lshl_b32 s65, s{sHh}, 2")
        b("v_lshrrev_b32 v3, 5, v2"); b("v_add_u32 v3, s65, v3"); b("v_xor_b32 v3, v3, v6")
        b("v_lshlrev_b32 v3, 4, v3"); b("v_bfe_u32 v4, v2, 4, 1"); b("v_lshl_add_u32 v3, v4, 3, v3")
        b("v_and_b32 v4, 15, v2"); b("v_lshl_add_u32 v3, v4, 7, v3")
        b("v_xor_b32 v4, 32, v3"); b("v_add_u32 v109, s64, v3"); b("v_add_u32 v110, s64, v4")
        b(f"s_add_u32 s64, s{sC}, 7"); b(f"s_sub_u32 s64, s64, s{sK}"); b("s_sub_u32 s65, s64, 7")
        b.lines.append("s_cmp_ge_u32 s64, 7\ns_cselect_b32 s64, s65, s64"); b("s_lshl_b32 s64, s64, 13")
        b(f"s_sub_u32 s64, s64, {OUTT - XIMG}")
        b("v_add_u32 v98, s64, v109"); b("v_add_u32 v99, s64, v110")
        b("s_mov_b32 s66, 0"); b(f"s_lshl_b32 s68, s{sR}, 2")
        early = len(b.lines)
        b(f"s_lshl_b32 s62, s{sC}, 1"); b(f"s_add_u32 s62, s62, s{sHh}")
        b(f"s_lshl_b32 s63, s{sPp}, 5"); b(f"s_add_u32 s63, s63, s{sR}")
        b("s_sub_u32 s64, 13, s62"); b("s_sub_u32 s65, 14, s62")
        b.lines.append("s_cmp_eq_u32 s65, 7\ns_cselect_b32 s65, 0, s65")
        b("s_sub_u32 s66, 64, s63"); b("s_and_b32 s66, s66, 63")
        b.lines.append(f"s_cmp_ge_u32 s62, 7\ns_cselect_b32 s{sMir}, 1, 0\ns_cselect_b32 s64, s64, s62\ns_cselect_b32 s65, s65, s62\n"
                       "s_cselect_b32 s66, s66, s63\ns_cselect_b32 s67, -1.0, 1.0")
        b("s_mul_i32 s66, s66, 7")
        b(f"s_add_u32 s{sGA}, s66, s64"); b(f"s_add_u32 s{sGB}, s66, s65")
        b(f"s_lshl_b32 s{sGA}, s{sGA}, 12"); b(f"s_lshl_b32 s{sGB}, s{sGB}, {7 if self.opt['c0'] else 12}")
        b(f"s_add_u32 s{sGA}, s{sGA}, {GBASE}"); b(f"s_add_u32 s{sGB}, s{sGB}, {C0BASE if self.opt['c0'] else GBASE}")
        b.lines.append(f"s_cmp_eq_u32 s{sMir}, 1\ns_cselect_b32 s{sGB}, s{sGB}, {OOB}")
        b("v_and_b32 v123, 15, v2"); b("v_lshlrev_b32 v123, 4, v123"); b(f"s_lshl_b32 s7, s{sPp}, 3"); b("v_add_u32 v123, s7, v123")
        MS, GO = self.opt["ms"], self.opt["go"]
        b(f"s_mul_i32 s7, s{sR}, {7*MS}"); b(f"s_add_u32 s7, s7, {MBOX}")
        b(f"s_mul_i32 s40, s{sC}, {MS}"); b("s_add_u32 s40, s40, s7"); b(f"s_add_u32 s7, s7, {GO}")
        b(f"s_mul_i32 s41, s64, {MS}"); b("s_add_u32 s41, s41, s7"); b(f"s_mul_i32 s42, s65, {MS}"); b("s_add_u32 s42, s42, s7")
        b(f"s_lshl_b32 s43, s{sR}, 8"); b(f"s_add_u32 s43, s43, {STATS}")
        b("v_lshlrev_b32 v103, 4, v2")
        b(f"s_mul_i32 s64, s{sR}, 344064"); b(f"s_mul_i32 s65, s{sC}, 49152"); b("s_add_u32 s64, s64, s65")
        b(f"s_lshl_b32 s65, s{sHh}, 12"); b("s_add_u32 s64, s64, s65")
        b(f"s_lshl_b32 s65, s{sPp}, 10"); b("s_add_u32 s64, s64, s65"); b(f"s_add_u32 s64, s64, {PBASE}")
        b("v_add_u32 v102, s64, v103")
        b("v_and_b32 v3, 3, v2"); b("v_cmp_eq_u32 vcc, 0, v3")
        b.lines.append(f"s_cmp_eq_u32 s62, 0\ns_cselect_b32 s64, 1, s{sMir}"); b("s_mul_i32 s64, s64, 0xffff")
        b("v_mov_b32 v3, s64"); b("v_lshrrev_b32 v105, 2, v2"); b(f"v_lshlrev_b32 v105, {1 if self.opt['c0'] else 6}, v105")
        b("v_cndmask_b32 v104, 0, v3, vcc")
        for rt in range(2):
            b("v_and_b32 v3, 15, v2")
            b(f"v_lshl_add_u32 v3, v3, 6, s63")
            if rt: b("v_add_u32 v3, 1024, v3")
            b("v_lshrrev_b32 v4, 4, v2"); b("v_lshlrev_b32 v4, 3, v4")
            b("v_mul_u32_u24 v4, v4, v3")
            b("v_cvt_f32_u32 v3, v3"); b("v_cvt_f32_u32 v4, v4")
            b(f"v_mul_f32 v3, {f32(1/2048)}, v3"); b(f"v_mul_f32 v4, {f32(1/2048)}, v4")
            b("v_mul_f32 v3, s67, v3"); b("v_mul_f32 v4, s67, v4")
            for q in range(8):
                b(f"v_fract_f32 v8, v4")
                b(f"v_cos_f32 v{16+q}, v8")
                b(f"v_sin_f32 v{24+q}, v8")
                b("v_add_f32 v4, v4, v3")
            for i in range(4):
                b(f"v_cvt_pk_bf16_f32 v{TW+4*rt+i}, v{16+2*i}, v{17+2*i}")
                b(f"v_cvt_pk_bf16_f32 v{TW+8+4*rt+i}, v{24+2*i}, v{25+2*i}")
        b(f"s_lshl_b32 s64, s{sU}, 12"); b(f"s_add_u32 s64, s64, {GST}")
        b("v_add_u32 v106, s64, v103")
        b("v_lshrrev_b32 v3, 4, v2"); b("v_bfe_u32 v4, v2, 2, 2"); b("v_lshl_add_u32 v3, v3, 3, v4")
        b("v_and_b32 v4, 3, v2"); b("v_lshlrev_b32 v4, 3, v4"); b("v_lshl_add_u32 v3, v3, 7, v4")
        b("v_add_u32 v107, s64, v3")
        b(f"s_lshl_b32 s64, s{sHh}, 13"); b(f"s_lshl_b32 s65, s{sPp}, 11"); b("s_add_u32 s64, s64, s65")
        b(f"s_add_u32 s64, s64, {OWN}"); b("v_add_u32 v108, s64, v103")
        b(f"s_lshl_b32 s64, s{sPp}, 12"); b(f"s_add_u32 s64, s64, {OUTT}"); b(f"s_lshl_b32 s65, s{sHh}, 2")
        b("v_and_b32 v3, 3, v2"); b("v_add_u32 v3, s65, v3"); b("v_bfe_u32 v4, v2, 2, 3"); b("v_xor_b32 v4, v3, v4")
        b("v_lshrrev_b32 v8, 2, v2"); b("v_lshlrev_b32 v4, 4, v4"); b("v_lshl_add_u32 v4, v8, 7, v4")
        b("v_add_u32 v111, s64, v4")
        b("v_lshl_add_u32 v8, v8, 6, s63"); b("v_mul_u32_u24 v8, 896, v8"); b("v_lshl_add_u32 v8, v3, 4, v8")
        b(f"s_lshl_b32 s64, s{sC}, 7"); b("v_add_u32 v120, s64, v8")
        b("v_xor_b32 v121, 48, v2"); b("v_add_u32 v122, 16, v121"); b("v_and_b32 v122, 63, v122")
        b("v_lshlrev_b32 v121, 2, v121"); b("v_lshlrev_b32 v122, 2, v122")
        b("s_mov_b32 s62, 0x00003f80"); b("s_mov_b32 s63, 0x3f800000")
        b(f"s_lshl_b32 s64, s{sHh}, 1"); b("s_lshl_b32 s64, 3, s64")
        b(f"s_mov_b32 s{sNext}, 0"); b(f"s_mov_b32 s{sG}, 0")
        XR, XU = 192, 200
        for i in range(8):
            b(f"v_lshlrev_b32 v{XU+2*i}, 16, v{XR+i}")
            b(f"v_and_b32 v{XU+2*i+1}, v12, v{XR+i}")
        setup = b.lines
        def work(n):
            nonlocal setup
            w = setup[:n]; setup = setup[n:]
            return w
        mix(dmas(2), [], 0)
        self.stamp(1)
        mix([], work(early), 0)
        self.wv(["D0"]); self.bar()
        self.stamp(2)
        mix(dmas(3), [], 0)
        if "trace" in self.abl:
            a("v_mov_b32 v4, 1"); a("v_lshlrev_b32 v3, 12, v0"); a("v_subrev_u32 v3, 0x100000, v3")
            srd(a, SD, 46, 256)
            a(f"buffer_atomic_add v4, v3, s[{SD}:{SD+3}], s68 offen sc1")
        else:
            a(f"s_cmp_lg_u32 s{sU}, 0")
            a("s_cbranch_scc1 L_noready")
            a("s_mov_b32 s69, 1")
            a("s_atomic_add s69, s[46:47], s68")
            a.label("L_noready")
        self.wv(["D1"]); self.bar()
        mix(dmas(4, 5), [], 0)
        self.wv(["D3"]); self.bar()

        for p in range(1, 6):
            mix(dmas(2*p+4, 2*p+5), [], 0)
            self.wv([f"D{2*p+3}"]); self.bar()
        o = self.opt
        for ct in range(2):
            for rt in range(2):
                a(f"ds_read_b64 {vr(XR+(ct*2+rt)*2, 2)}, v{98+ct} offset:{rt*2048}")
        nxt = [16]
        def issue(n, limit):
            st = list(range(nxt[0], min(nxt[0] + n, limit))); nxt[0] += len(st)
            mix(dmas(*st), [], 0)
        issue(2, 18)
        self.wv(["D15"], True); self.bar()
        issue(o["e9"], 22)
        a("s_load_dword s69, s[46:47], s68")
        mix([], work(o["wx"]), 0)
        a("s_waitcnt vmcnt(0)"); self.bar()
        mix([], work(o["wd"]), 0)
        issue(o["nw"], 22)
        self.bar()
        issue(o["nh"], 24)
        a.label("L_rdy")
        a("s_waitcnt lgkmcnt(0)")
        a("s_cmp_ge_u32 s69, 7")
        a("s_cbranch_scc1 L_rdy_ok")
        a("s_load_dword s69, s[46:47], s68 glc")
        a("s_add_u32 s66, s66, 1")
        a(f"s_cmp_lt_u32 s66, {SPIN}")
        a("s_cbranch_scc1 L_rdy")
        a.label("L_rdy_ok")
        self.bar()
        issue(o["n8"], 26)
        self.wv(["D19"]); self.bar()
        issue(o["n9"], 28)
        self.wv(["D21"]); self.bar()
        issue(9, 28)
        self.stamp(3)
        if o["lastb"] == 12:
            mix([], work(40), 0)
            self.wv(["D23"]); self.bar()
            mix([], work(60), 0)
        self.wv(["D27"]); self.bar()
        mix([], work(300), 0)
        PD, SUM, GD, GP, GF, Y, Y2, OW = 144, 16, 32, 48, 52, 68, 84, 216
        cnt = [0]
        def poll():
            a("s_load_dword s52, s[48:49], s40 glc")
        def wait_flag(tau):
            n = cnt[0]; cnt[0] += 1
            a(f"s_lshl_b32 s56, s64, {4*tau}")
            a("s_andn2_b32 s65, s56, s55")
            a(f"s_cbranch_scc0 L_wf{n}_ok")
            a.label(f"L_wf{n}")
            a.lines.append("    s_waitcnt lgkmcnt(0)")
            a("s_or_b32 s55, s55, s52")
            a("s_andn2_b32 s65, s56, s55")
            a(f"s_cbranch_scc0 L_wf{n}_ok")
            poll()
            a("s_add_u32 s66, s66, 1")
            a(f"s_cmp_lt_u32 s66, {SPIN}")
            a(f"s_cbranch_scc1 L_wf{n}")
            a.label(f"L_wf{n}_ok")
        def load_p(tau):
            wait_flag(tau)
            a(f"s_mov_b32 s65, {tau*8192}")
            for ct in range(2):
                a(f"buffer_load_dwordx4 {vr(PD+8*tau+4*ct)}, v102, s[{SW}:{SW+3}], s65 offen offset:{ct*2048} sc1")
            if tau in (0, 5): self.stamp(7 if tau == 0 else 8)
        added = [False]
        def add_p(tau):
            self.wv([f"v{PD+8*tau+4}"])
            if tau == 5: self.stamp(9)
            for rt in range(2):
                for ct in range(2):
                    for i in range(2):
                        for h in range(2):
                            d = SUM + (ct*2+rt)*4 + 2*i + h
                            a(f"v_dot2_f32_bf16 v{d}, v{PD+8*tau+4*ct+2*rt+i}, s{62+h}, {f'v{d}' if added[0] else '0'}")
            added[0] = True
        def own():
            self.bar()
            d = OW if added[0] else SUM
            for ct in range(2):
                for rt in range(2):
                    a(f"ds_read_b128 {vr(d+(ct*2+rt)*4)}, v108 offset:{ct*4096 + rt*1024}")
            a("s_waitcnt lgkmcnt(0)")
            if added[0]:
                for i in range(16): a(f"v_add_f32 v{SUM+i}, v{SUM+i}, v{OW+i}")
            added[0] = True
        def load_g(k=None):
            if k is not None: a(f"s_mul_i32 s56, s64, {hex(0x111111 & ((1 << (4*k+4)) - 1))}")
            a.label("L_gw")
            for i in range(3): a(f"s_load_dword s{52+i}, s[48:49], s{40+i} glc")
            a("s_add_u32 s66, s66, 1")
            a("s_waitcnt lgkmcnt(0)")
            a("s_or_b32 s55, s55, s52")
            a(f"s_cmp_ge_u32 s66, {SPIN}")
            a("s_cbranch_scc1 L_gg")
            a("s_lshr_b32 s65, s52, 19")
            a("s_and_b32 s65, s65, s53"); a("s_and_b32 s65, s65, s54")
            a("s_bitcmp1_b32 s65, 5")
            if "nog" not in self.abl: a("s_cbranch_scc0 L_gw")
            if k is not None:
                a.label("L_gw2")
                a("s_andn2_b32 s65, s56, s55")
                a("s_cbranch_scc0 L_gg")
                poll()
                a("s_add_u32 s66, s66, 1")
                a("s_waitcnt lgkmcnt(0)")
                a("s_or_b32 s55, s55, s52")
                a(f"s_cmp_lt_u32 s66, {SPIN}")
                a("s_cbranch_scc1 L_gw2")
            a.label("L_gg")
            for i in range(4):
                a(f"buffer_load_dwordx4 {vr(GD+4*i)}, v103, s[{SW}:{SW+3}], s{sGA} offen offset:{1024*i} sc1")
            for i in range(4):
                a(f"buffer_load_ushort v{GP+i}, v105, s[{SW}:{SW+3}], s{sGB} offen offset:{(32 if self.opt['c0'] else 1024)*i} sc1")
            a(f"buffer_load_dwordx2 v[124:125], v123, s[{SW}:{SW+3}], s43 offen sc1")
            self.stamp(4)
        def proc_g():
            self.wv(["v124"])
            self.stamp(5)
            for i in range(4):
                a(f"v_bfi_b32 v{GD+4*i}, v104, v{GP+i}, v{GD+4*i}")
                a(f"ds_write_b128 v106, {vr(GD+4*i)} offset:{1024*i}")
            for part in range(2):
                for ct in range(2):
                    for h in range(2):
                        a(f"ds_read_b64_tr_b16 {vr(GF+(ct*2+part)*4+2*h, 2)}, v107 offset:{h*512 + part*64 + ct*32}")
            self.run([mfma(Y+(ct*2+rt)*4, GF+(ct*2+part)*4, TW+8*part+4*rt, "0" if part == 0 else None)
                      for part in range(2) for ct in range(2) for rt in range(2)], {})
            for i in range(4): a(f"v_mul_f32 v{112+i}, {f32(-1.4426950408889634)}, v{124+i//2}")
            a("v_mov_b32 v116, 1.0"); a("v_mov_b32 v117, 1.0")
            a(f"s_cmp_eq_u32 s{sMir}, 0")
            a("s_cbranch_scc1 L_nomir")
            a("s_nop 4")
            for ct in range(2):
                for rt in range(2):
                    a(f"ds_bpermute_b32 v{Y2+(ct*2+rt)*4}, v122, v{Y+(ct*2+rt)*4}")
                    for e in range(1, 4):
                        a(f"ds_bpermute_b32 v{Y2+(ct*2+rt)*4+e}, v121, v{Y+((1-ct)*2+rt)*4+4-e}")
            a("s_mov_b64 vcc, 0xffff")
            a("s_waitcnt lgkmcnt(0)")
            for ct in range(2):
                for rt in range(2):
                    a(f"v_cndmask_b32 v{Y+(ct*2+rt)*4}, v{Y2+((1-ct)*2+rt)*4}, v{Y2+(ct*2+rt)*4}, vcc")
                    for e in range(1, 4):
                        a(f"v_mov_b32 v{Y+(ct*2+rt)*4+e}, v{Y2+(ct*2+rt)*4+e}")
            a.label("L_nomir")
            a("s_nop 4")
            for ct in range(2):
                for rt in range(2):
                    for e in range(4):
                        i = Y + (ct*2+rt)*4 + e
                        a(f"v_mul_f32 v{i}, v{i}, v{124+rt}")
            self.stamp(6)
        a("s_mov_b32 s55, 0"); a("s_mov_b32 s52, 0")
        for it in SCRIPTS[o["gs"]].split():
            if it == "F": own()
            elif it == "P": poll()
            elif it == "LG": load_g()
            elif it == "PG": proc_g()
            else: {"W": wait_flag, "L": load_p, "A": add_p, "G": load_g}[it[0]](int(it[1]))
        T = 52
        a(f"s_mov_b32 s65, {16*64*896}")
        for rt in range(2):
            idx = [(ct*2+rt)*4 + e for ct in range(2) for e in range(4)]
            for i in idx[::2]: a(f"v_pk_mul_f32 {vr(T+i,2)}, {vr(SUM+i,2)}, {vr(112+2*rt,2)}")
            for i in idx: a(f"v_exp_f32 v{T+i}, v{T+i}")
            for i in idx[::2]: a(f"v_pk_mul_f32 {vr(Y+i,2)}, {vr(Y+i,2)}, {vr(SUM+i,2)}")
            for i in idx[::2]: a(f"v_pk_add_f32 {vr(T+i,2)}, {vr(T+i,2)}, v[116:117]")
            for i in idx: a(f"v_rcp_f32 v{T+i}, v{T+i}")
            if rt == 1:
                self.wl([f"v{GD}"])
                a(f"buffer_store_dwordx4 {vr(GD)}, v120, s[{SO}:{SO+3}], 0 offen {['', 'sc1', 'nt', 'sc0 sc1'][o['of']]}")
            for i in idx[::2]: a(f"v_pk_fma_f32 {vr(Y+i,2)}, {vr(Y+i,2)}, {vr(T+i,2)}, {vr(XU+i,2)}")
            for ct in range(2):
                n = ct*2 + rt
                for i in range(2): a(f"v_cvt_pk_bf16_f32 v{XR+2*n+i}, v{Y+4*n+2*i}, v{Y+4*n+2*i+1}")
                a(f"ds_write_b64 v{109+ct}, {vr(XR+2*n, 2)} offset:{rt*2048}")
            a(f"ds_read_b128 {vr(GD+4*rt)}, v111 offset:{rt*2048}")
        a("s_waitcnt lgkmcnt(0)")
        a(f"buffer_store_dwordx4 {vr(GD+4)}, v120, s[{SO}:{SO+3}], s65 offen {['', 'sc1', 'nt', 'sc0 sc1'][o['of']]}")
        self.stamp(10)
        self.stamp_out(11)
        a("s_endpgm")

    def dft_head(self):
        a = self.a
        a.label("L_dft")
        self.tr.reset()
        a("v_lshrrev_b32 v5, 3, v0")
        a(f"v_lshl_add_u32 v7, v5, 5, s{sR}")
        a("v_mul_u32_u24 v7, 896, v7")
        a("v_lshl_add_u32 v7, v6, 4, v7")
        a("v_lshrrev_b32 v8, 2, v6")
        a("v_lshl_or_b32 v8, v8, 30, v7")
        a("s_waitcnt lgkmcnt(0)")
        a(f"s_mov_b32 s{SX}, s4")
        a(f"s_and_b32 s{SX+1}, s5, 0xffff")
        for k in range(4):
            for h in range(2):
                a(f"buffer_load_dwordx4 {vr(16+8*k+4*h)}, v{8 if k == 3 else 7}, s[{SX}:{SX+3}], 0 offen offset:{128*k + 448*h}")
        a("s_branch L_dft2")
        self.dft_after_x = [set(e) for e in self.tr.vm]

    def dft(self):
        a = self.a; sp = self.spread
        DXR, DU = 16, 48
        AF, BF, AC, Z, TW = [16, 32], 128, 48, 128, 112
        XA, TA, RS = 248, 250, 254
        sBase = 50
        MS, GO = self.opt["ms"], self.opt["go"]
        a.label("L_dft2")
        self.tr.lds, self.tr.vm = [], self.dft_after_x
        srd(a, SW, 48, WS_BYTES)
        srd(a, SD, 46, 256)
        a("v_mov_b32 v12, 0xffff0000")
        a("v_mov_b32 v244, 0"); a("v_mov_b32 v245, 0"); a("v_mov_b32 v15, 0")
        a("v_bfe_u32 v3, v5, 1, 4"); a("v_and_b32 v4, 1, v5"); a("v_lshl_add_u32 v3, v3, 1, v4")
        a("v_lshrrev_b32 v4, 5, v5"); a("v_lshl_add_u32 v3, v3, 1, v4"); a("v_lshlrev_b32 v3, 2, v3")
        a(f"v_add_u32 v{RS}, {RSL}, v3")
        self.ximg_waddr()
        a("s_mov_b32 s54, 0x0f0f0f0f"); a("s_mov_b32 s55, 0x0f0f0f0f")
        a(f"s_cmp_eq_u32 s{sWV}, 7")
        a("s_cbranch_scc1 L_dft_w7")
        saved7 = [set(e) for e in self.tr.vm]
        a("s_add_u32 s6, s6, L_tab-L_pc"); a("s_addc_u32 s7, s7, 0")
        a(f"s_mul_i32 s52, s{sWV}, 28672"); a("s_add_u32 s52, s52, 8192")
        a(f"v_lshl_add_u32 v{TA}, v2, 4, s52")
        for i in range(1, 4): a(f"v_add_u32 v{TA+i}, {8192*i}, v{TA}")
        a(f"s_lshl_b32 s{sBase}, s{sWV}, 13"); a(f"s_add_u32 s{sBase}, s{sBase}, {DW}")
        self.ximg_raddr(XA, XA+1, DX)
        bl = [f"global_load_dwordx4 {vr(BF+4*n)}, v{TA+n//8}, s[6:7] offset:{1024*(n%8) - 4096}" for n in range(28)]
        def ln(loads):
            for k in range(4):
                self.wv([f"v{DXR+8*k+4}"])
                for i in range(4):
                    x1 = DXR + 8*k + i; x2 = x1 + 4; u = DU + 16*k + 4*i
                    a(f"v_dot2_f32_bf16 v15, v{x1}, v{x1}, v15")
                    a(f"v_lshlrev_b32 v240, 16, v{x1}")
                    a(f"v_and_b32 v241, v12, v{x1}")
                    a(f"v_dot2_f32_bf16 v15, v{x2}, v{x2}, v15")
                    a(f"v_lshlrev_b32 v242, 16, v{x2}")
                    a(f"v_and_b32 v243, v12, v{x2}")
                    a(f"v_pk_add_f32 {vr(u,2)}, v[240:241], v[242:243]")
                    a(f"v_sub_f32 v{u+2}, v240, v242"); a(f"v_sub_f32 v{u+3}, v241, v243")
                    a(f"v_pk_add_f32 v[244:245], v[244:245], {vr(u,2)}")
                    if loads and i % 2 == 1 and k >= self.opt["dk"]: a(loads.pop(0))
            self.stamp(1)
            a("v_add_f32 v14, v244, v245")
            a("s_nop 1")
            for x in self.ln_stats([(13, 14, 15)]): a(x)
            a("v_add_f32 v13, v13, v13")
            a("v_mov_b32 v15, v14")
            a("v_mul_f32 v240, v13, v14"); a("v_mul_f32 v241, v13, v14")
            a(f"ds_write_b32 v{RS}, v14")
            for par in range(2):
                for k in range(4):
                    for i in range(4):
                        u = DU + 16*k + 4*i + 2*par
                        if par == 0: a(f"v_pk_fma_f32 {vr(u,2)}, {vr(u,2)}, v[14:15], v[240:241]")
                        else: a(f"v_pk_mul_f32 {vr(u,2)}, {vr(u,2)}, v[14:15]")
                        a(f"v_cvt_pk_bf16_f32 v{DXR+8*k+4*par+i}, v{u}, v{u+1}")
                    if k == 3: a("s_mov_b64 exec, s[54:55]")
                    a(f"ds_write_b128 v9, {vr(DXR+8*k+4*par)} offset:{k*8192 + par*28672}")
                    if k == 3: a("s_mov_b64 exec, -1")
                    if loads: a(loads.pop(0))
            a("s_waitcnt lgkmcnt(0)")
            self.bar()
        ln(bl)
        self.stamp(2)
        if self.opt["prio"]:
            a(f"s_cmp_ge_u32 s{sWV}, 4"); a("s_cbranch_scc1 L_dft_lo"); a("s_setprio 2"); a.label("L_dft_lo")
        def rds(n):
            par, k = n // 7, n % 7
            return [f"ds_read_b128 {vr(AF[n%2]+4*t)}, v{XA+(k%2)} offset:{par*28672 + (k//2)*8192 + t*1024}" for t in range(4)]
        def mms(n):
            par, k = n // 7, n % 7
            return [mfma(AC + 32*par + 16*im + 4*t, AF[n%2]+4*t, BF+8*n+4*im, "0" if k == 0 else None) for im in range(2) for t in range(4)]
        def zepi(tile):
            s = AC + 16*tile; o = Z + 8*tile; l = []
            for t in range(2):
                for e in range(0, 4, 2):
                    x = s + 4*t + e; y = x + 8
                    l.append(f"v_add_f32 v3, v{x}, v{y}\nv_add_f32 v4, v{x+1}, v{y+1}")
                    l.append(f"v_sub_f32 v10, v{x}, v{y}\nv_sub_f32 v13, v{x+1}, v{y+1}")
                    l.append(f"v_cvt_pk_bf16_f32 v{o+2*t+e//2}, v3, v4")
                    l.append(f"v_cvt_pk_bf16_f32 v{o+4+2*t+e//2}, v10, v13")
            return l
        addr = Asm()
        addr("v_and_b32 v5, 7, v2"); addr("v_xor_b32 v5, v5, v11"); addr("v_lshlrev_b32 v5, 4, v5")
        addr("v_lshl_add_u32 v5, v8, 7, v5"); addr("v_xor_b32 v6, 64, v5")
        addr(f"v_add_u32 v9, s{sBase}, v5"); addr(f"v_add_u32 v7, s{sBase}, v6")
        addr("v_lshrrev_b32 v5, 3, v2"); addr("v_and_b32 v6, 7, v2"); addr("v_xor_b32 v14, v5, v6")
        addr("v_lshlrev_b32 v14, 4, v14"); addr("v_lshl_add_u32 v14, v5, 7, v14"); addr(f"v_add_u32 v14, s{sBase}, v14")
        addr("v_mul_u32_u24 v15, 57344, v5"); addr("v_lshl_add_u32 v15, v6, 4, v15")
        addr(f"s_lshl_b32 s56, s{sWV}, 12"); addr(f"s_lshl_b32 s57, s{sR}, 7"); addr("s_add_u32 s56, s56, s57")
        addr(f"s_add_u32 s56, s56, {GBASE}")
        addr("v_add_u32 v15, s56, v15")
        addr("v_lshlrev_b32 v242, 4, v6"); addr("v_lshl_add_u32 v242, v2, 7, v242"); addr(f"v_add_u32 v242, s{sBase}, v242")
        addr("v_xor_b32 v243, 64, v242")
        addr("v_and_b32 v5, 31, v2"); addr("v_lshrrev_b32 v6, 5, v2"); addr("v_lshl_add_u32 v5, v5, 1, v6")
        addr(f"s_lshl_b32 s56, s{sWV}, 7"); addr(f"s_lshl2_add_u32 s56, s{sR}, s56"); addr(f"s_add_u32 s58, s56, {C0BASE}")
        addr("v_mul_u32_u24 v244, 896, v5")
        addr("v_lshlrev_b32 v5, 2, v2")
        addr("v_mov_b32 v240, 0x80008000"); addr("v_mov_b32 v241, 0x80000000")
        for x in rds(0): a(x)
        a("v_lshlrev_b32 v246, 4, v2")
        bl += [f"global_load_dwordx4 {vr(TW+4*i)}, v246, s[6:7] offset:{1024*i}" for i in range(4)]
        for _ in range(2): a(bl.pop(0))
        ms = []; f = {}
        for n in range(14):
            ms += mms(n)
            if n < 13:
                sp(f, rds(n+1), 8*n)
                f.setdefault(8*n+7, []).append(lambda n=n: self.wv([f"v{BF+8*n+12}"]))
            for g in (4, 5, 6):
                if bl: f.setdefault(8*n+g, []).append(bl.pop(0))
        assert not bl
        sp(f, addr.lines, 20)
        sp(f, zepi(0) + zepi(1), 62)
        f.setdefault(100, []).append(f"buffer_load_dword v6, v5, s[{SD}:{SD+3}], 0 offen sc1")
        self.wv([f"v{BF+4}"])
        self.run(ms, f, look=4)
        self.stamp(3)
        NB, TX, GA, GP, GR = 16, 32, 160, 48, 80
        self.wv([f"v{TW+12}"])
        for i in range(16):
            a(f"v_xor_b32 v{TX+i}, v241, v{TW+i}")
        for x in zepi(2) + zepi(3): a(x)
        for eo in range(2):
            for i in range(8):
                a(f"v_xor_b32 v{NB+8*eo+i}, v240, v{Z+16*eo+8+i}")
        def s1(T):
            par = T >> 1; tw = (TX if T & 1 else TW) + 8*par; g = GA + 16*T; l1 = []; l2 = []
            for eo in range(2):
                za = Z + 16*eo + 4*par; zb = za + 8; nb = NB + 8*eo + 4*par
                l1.append(mfma(g + 4*eo, za, tw, "0")); l2.append(mfma(g + 4*eo, nb, tw+4))
                l1.append(mfma(g + 8 + 4*eo, zb, tw, "0")); l2.append(mfma(g + 8 + 4*eo, za, tw+4))
            return l1 + l2
        def s1epi(T):
            g = GA + 16*T; o = GP + 8*T; l = []
            for part in range(2):
                for e in range(4):
                    l.append(f"v_cvt_pk_bf16_f32 v{o+4*part+e}, v{g+8*part+e}, v{g+8*part+4+e}")
                l.append(f"ds_write_b128 v{7 if part else 9}, {vr(o+4*part)} offset:{T*2048}")
            for n in (2*T, 2*T+1):
                l.append(f"ds_read_b128 {vr(GR+4*n)}, v14 offset:{n*1024}")
            return l
        def gstore(n):
            def g():
                T = n >> 1
                a(f"s_mov_b32 s56, {(16*(n&1) + 32*(T&1) + (T>>1))*28672}")
                self.wl([f"v{GR+4*n}"])
                a(f"buffer_store_dwordx4 {vr(GR+4*n)}, v15, s[{SW}:{SW+3}], s56 offen sc1")
            return g
        f = sp({}, s1epi(0), 15, 2); sp(f, s1epi(1), 22, 2); sp(f, [gstore(0), gstore(1)], 30)
        self.run(s1(0) + s1(1) + s1(2) + s1(3), f)
        c0 = ["ds_read_u16 v10, v242", "ds_read_u16 v13, v243"]
        for x in s1epi(2) + [gstore(2), gstore(3)] + s1epi(3) + c0 + [gstore(n) for n in range(4, 8)]: self.emit(x)
        a("s_waitcnt lgkmcnt(0)")
        a("v_lshl_or_b32 v10, v13, 16, v10")
        if self.opt["c0"]: a(f"buffer_store_dword v10, v244, s[{SW}:{SW+3}], s58 offen sc1")
        self.stamp(4)
        a(f"s_mul_i32 s56, s{sWV}, {MS}"); a(f"s_add_u32 s56, s56, {MBOX + GO}")
        a(f"v_mul_u32_u24 v3, {7*MS}, v2"); a("v_add_u32 v3, s56, v3")
        a("v_mov_b32 v4, 1")
        a("s_mov_b32 s54, 0")
        a.label("L_drdy")
        a("s_waitcnt vmcnt(0)")
        a("v_cmp_le_u32 vcc, 7, v6")
        a("s_add_u32 s54, s54, 1")
        a(f"s_cmp_ge_u32 s54, {SPIN}")
        a("s_cbranch_scc1 L_dgo")
        a("s_cmp_eq_u32 vcc_lo, -1")
        a("s_cbranch_scc1 L_dgo")
        a(f"buffer_load_dword v6, v5, s[{SD}:{SD+3}], 0 offen sc1")
        a("s_branch L_drdy")
        a.label("L_dgo")
        self.tr.reset()
        a("s_mov_b32 exec_hi, 0")
        a(f"buffer_atomic_add v4, v3, s[{SW}:{SW+3}], 0 offen sc1")
        a("s_mov_b64 exec, -1")
        self.stamp(5)
        a("s_branch L_dft_end")
        a.label("L_dft_w7")
        self.tr.lds, self.tr.vm = [], saved7
        ln([])
        a("v_lshlrev_b32 v5, 2, v2")
        a(f"v_add_u32 v3, {RSL}, v5")
        a("ds_read_b32 v4, v3")
        a(f"s_lshl_b32 s56, s{sR}, 8"); a(f"s_add_u32 s56, s56, {STATS}")
        a(f"s_lshl_b32 s57, s{sR}, 2"); a(f"s_mul_i32 s58, s{sR}, {7*MS}"); a(f"s_add_u32 s58, s58, {MBOX}")
        a("s_waitcnt lgkmcnt(0)")
        a(f"buffer_store_dword v4, v5, s[{SW}:{SW+3}], s56 offen sc1")
        a(f"v_mul_u32_u24 v3, {MS}, v2"); a("v_mov_b32 v6, 0x1000000")
        a("s_mov_b32 s54, 0")
        a("s_waitcnt vmcnt(0)")
        a.label("L_w7rdy")
        a("s_load_dword s55, s[46:47], s57 glc")
        a("s_add_u32 s54, s54, 1")
        a("s_waitcnt lgkmcnt(0)")
        a(f"s_cmp_ge_u32 s54, {SPIN}")
        a("s_cbranch_scc1 L_w7go")
        a("s_cmp_ge_u32 s55, 7")
        a("s_cbranch_scc0 L_w7rdy")
        a.label("L_w7go")
        a("s_mov_b64 exec, 0x7f")
        a(f"buffer_atomic_or v6, v3, s[{SW}:{SW+3}], s58 offen sc1")
        a("s_mov_b64 exec, -1")
        a.label("L_dft_end")
        self.stamp_out(6)
        a.label("L_end")
        a("s_endpgm")

    def table(self):
        a = self.a
        def row(v): a.raw(".quad " + ",".join("0x%x" % (v[4*i] | v[4*i+1] << 16 | v[4*i+2] << 32 | v[4*i+3] << 48) for i in range(len(v)//4)))
        a.raw(".p2align 8")
        a.raw(".type L_tab,@object")
        a.label("L_tab")
        for par in range(2):
            for fn in (math.cos, math.sin):
                for lane in range(64):
                    t0 = 2*(lane & 15) + par; g = lane >> 4
                    row([bf16(fn(-2*math.pi*(((16*(q >> 2) + 4*g + (q & 3))*t0) % 64)/64)) for q in range(8)])
        tab = {fn: [bf16(round(fn(-2*math.pi*m/448), 15)) for m in range(448)] for fn in (math.cos, math.sin)}
        for w in range(7):
            for par in range(2):
                for k in range(7):
                    for fn in (math.cos, math.sin):
                        for l0 in range(0, 64, 8):
                            v = []
                            for lane in range(l0, l0 + 8):
                                e = 32*w + 2*(lane & 15) + par or 224
                                v += [tab[fn][(e*(32*k + 8*(lane >> 4) + q)) % 448] for q in range(8)]
                            row(v)
        a.raw(f".size L_tab, {4096 + 7*28672}")

    def build(self):
        a = self.a
        K = NAME + "_kernel"
        kernel_begin(a, K)
        self.prologue()
        self.helper(0)
        self.dft_head()
        a.raw(".p2align 3")
        a.label("L_compute")
        self.compute()
        self.helper(1)
        self.dft()
        self.table()
        hdr = open("cdna_kernels/" + NAME + ".s.ref").read().split("; Override launch")[0]
        return hdr + file_text([f"grid=(256,1,1) block=(512,1,1) lds={LDS_BYTES}"], a.text(), [descriptor(K, 256, 102, 256)])

if __name__ == "__main__":
    import argparse, subprocess
    ap = argparse.ArgumentParser()
    ap.add_argument("-o", default="k.s"); ap.add_argument("--mapping", default="4")
    ap.add_argument("--abl", default=""); ap.add_argument("--stamps", action="store_true"); ap.add_argument("--opt", default="")
    r = ap.parse_args()
    opt = {k: int(v) for k, v in (x.split("=") for x in r.opt.split(",") if x)}
    g = Gen(r.mapping, r.stamps, [x for x in r.abl.split(',') if x], opt)
    t = g.build()
    open(r.o, "w").write(t)
    rc = subprocess.run(["clang", "-x", "assembler", "-target", "amdgcn-amd-amdhsa", "-mcpu=gfx950", "-c", r.o, "-o", r.o + ".o"], capture_output=True, text=True)
    for e in g.tr.errors[:20]: print("WAIT:", e)
    print(r.o, "hazards:", hazcheck.check(t), "waits:", len(g.tr.errors), "asm:", "ok" if rc.returncode == 0 else rc.stderr[:2000])
```

```python
import sys, struct, math
from asmlib import *
import hazcheck

MBOX = 0xc00000
PBASE = 0x100000
GBASE = 0x1000000
C0BASE = 0x40000
STATS = 0x80000
STAMP = 0x1400000
WS_BYTES = 0x1800000
OOB = 0x7ff00000
XIMG = 98304
HIMG = 0
GST = XIMG
OWN = XIMG + 16384
OUTT = XIMG + 32768
LDS_BYTES = 163840
DX = 0
DW = 57344
SX, SA, SB, SW, SO, SD = 8, 12, 16, 20, 24, 28
sR, sJ, sC, sWV, sK = 32, 33, 34, 35, 3
SPIN = 20000
RSL = LDS_BYTES - 256

def slot(pair):
    return 32768 * (pair % 3 if pair < 9 else {9: 3, 10: 4, 11: 1, 12: 0, 13: 2}[pair])

def f32(x):
    return "0x%08x" % struct.unpack("<I", struct.pack("<f", x))[0]

def bf16(x):
    u = struct.unpack("<I", struct.pack("<f", x))[0]
    return ((u + 0x7fff + ((u >> 16) & 1)) >> 16) & 0xffff

def vr(b, n=4):
    return f"v[{b}:{b+n-1}]"

def mfma(d, a, b, c=None):
    cc = vr(d) if c is None else c
    return f"v_mfma_f32_16x16x32_bf16 {vr(d)}, {vr(a)}, {vr(b)}, {cc}"

SCRIPTS = [
    "W3 L0 L1 P A0 L2 P A1 L3 P A2 LG A3 L4 L5 PG F A4 A5",
    "LG PG W3 L0 L1 P A0 L2 P A1 L3 P A2 L4 P A3 L5 F A4 A5",
    "W4 L0 L1 P A0 L2 P A1 L3 P A2 LG A3 L4 L5 PG F A4 A5",
    "W2 L0 L1 P A0 L2 P A1 L3 P A2 LG A3 L4 L5 PG F A4 A5",
    "W3 L0 L1 L2 P A0 L3 P A1 LG A2 L4 A3 L5 PG F A4 A5",
    "LG PG W4 L0 L1 L2 P A0 L3 A1 L4 A2 L5 F A3 A4 A5",
    "LG PG W5 L0 L1 L2 L3 L4 L5 F A0 A1 A2 A3 A4 A5",
    "LG PG L0 L1 P A0 L2 P A1 L3 P A2 L4 P A3 L5 F A4 A5",
    "G5 L0 L1 L2 L3 L4 L5 PG F A0 A1 A2 A3 A4 A5",
    "G4 P L0 L1 L2 L3 L4 L5 PG F A0 A1 A2 A3 A4 A5",
    "G3 P L0 L1 L2 L3 L4 L5 PG F A0 A1 A2 A3 A4 A5",
    "G3 W4 L0 L1 L2 L3 L4 L5 PG F A0 A1 A2 A3 A4 A5",
    "G3 W5 L0 L1 L2 L3 L4 L5 PG F A0 A1 A2 A3 A4 A5",
    "G2 PG W5 L0 L1 L2 L3 L4 L5 F A0 A1 A2 A3 A4 A5",
]

class Gen:
    def __init__(self, mapping="4", stamps=False, abl=(), opt=None):
        self.tr = hazcheck.Tracker()
        self.a = Asm(self.tr); self.mapping = mapping; self.stamps = stamps; self.abl = set(abl)
        self.opt = dict(prio=1, e9=2, wx=40, wd=35, nw=1, nh=2, n8=2, n9=3, lastb=12, gs=6, dk=0, xb=44, of=0, c0=0, wo=0, nk=2, sfirst=10, refl=1, ms=4352, go=0x100080, slp=0, lag=80, w0=110, wp=30, kj=0, xf=0, wf=0, xa=0)
        self.opt.update(opt or {})

    def tag(self, name):
        self.tr.vm[-1].add(name)
    def wl(self, regs):
        n = self.tr.need(self.tr.lds, set(regs))
        if n is not None: self.a(f"s_waitcnt lgkmcnt({min(n, 15)})")
    def wv(self, regs, lgkm0=False):
        n = self.tr.need(self.tr.vm, set(regs))
        if n is not None and lgkm0: self.a(f"s_waitcnt vmcnt({n}) lgkmcnt(0)")
        elif n is not None: self.a(f"s_waitcnt vmcnt({n})")
        elif lgkm0: self.a("s_waitcnt lgkmcnt(0)")
    def emit(self, item):
        if callable(item): item()
        else: self.a(item)
    def run(self, ms, fills, look=4):
        R = lambda m: hazcheck.Ins(m, 0).r
        for g, m in enumerate(ms):
            if self.tr.need(self.tr.lds, R(m)) is not None:
                regs = set()
                for m2 in ms[g:g+look]: regs |= R(m2)
                self.wl(regs)
            self.a(m)
            for f in fills.get(g, []): self.emit(f)
    @staticmethod
    def spread(fills, items, g0, per=1):
        g = g0; n = 0
        for it in items:
            fills.setdefault(g, []).append(it); n += 1
            if n == per: n = 0; g += 1
        return fills

    def stamp(self, i):
        if self.stamps:
            self.a(f"{'s_memrealtime' if 'rt' in self.abl else 's_memtime'} s[{72+2*i}:{73+2*i}]")

    def bar(self):
        a = self.a
        if "trace" in self.abl:
            a("s_waitcnt lgkmcnt(0)")
            a("s_mov_b32 m0, s100"); a("s_add_u32 s100, s100, 2")
            a("v_writelane_b32 v1, s96, m0"); a("s_add_u32 m0, m0, 1"); a("s_nop 0")
            a("v_writelane_b32 v1, s98, m0")
            a("s_memtime s[96:97]")
            a("s_barrier")
            a("s_memtime s[98:99]")
        else:
            a("s_barrier")

    def stamp_out(self, n):
        if not self.stamps: return
        a = self.a
        a("s_memrealtime s[68:69]")
        a("s_getreg_b32 s67, hwreg(HW_REG_XCC_ID)")
        a("s_waitcnt vmcnt(0) lgkmcnt(0)")
        a("s_lshl_b32 s66, s33, 8"); a("s_or_b32 s67, s67, s66")
        a("s_lshl_b32 s66, s32, 16"); a("s_or_b32 s67, s67, s66")
        a("s_lshl_b32 s66, s34, 24"); a("s_or_b32 s67, s67, s66")
        a("v_mov_b32 v16, s70"); a("v_mov_b32 v17, s68"); a("v_mov_b32 v18, s67")
        for i in range(1, 14):
            if i < n:
                a(f"s_sub_u32 s66, s{72+2*i}, s72"); a(f"v_mov_b32 v{18+i}, s66")
            else:
                a(f"v_mov_b32 v{18+i}, 0")
        a("s_lshl_b32 s66, s2, 3"); a(f"s_add_u32 s66, s66, s{sWV}"); a("s_lshl_b32 s66, s66, 6")
        a(f"s_add_u32 s66, s66, {STAMP}")
        a("s_mov_b64 exec, 1")
        for i in range(4):
            a(f"buffer_store_dwordx4 {vr(16+4*i)}, off, s[{SW}:{SW+3}], s66 offset:{16*i}")
        a("s_mov_b64 exec, -1")
        if "trace" in self.abl:
            a("s_mov_b32 m0, s100"); a("s_add_u32 s100, s100, 2")
            a("v_writelane_b32 v1, s96, m0"); a("s_add_u32 m0, m0, 1"); a("s_nop 0")
            a("v_writelane_b32 v1, s98, m0")
            a("v_subrev_u32 v1, s72, v1")
            a("s_lshl_b32 s66, s2, 3"); a(f"s_add_u32 s66, s66, s{sWV}"); a("s_lshl_b32 s66, s66, 8")
            a(f"s_add_u32 s66, s66, {STAMP + 0x40000}")
            a("v_lshlrev_b32 v3, 2, v2")
            a(f"buffer_store_dword v1, v3, s[{SW}:{SW+3}], s66 offen")

    def prologue(self):
        a = self.a
        if self.stamps:
            a("s_memrealtime s[70:71]")
        self.stamp(0)
        if "trace" in self.abl: a("s_mov_b32 s100, 0")
        a("s_load_dwordx2 s[4:5], s[0:1], 0")
        a("s_load_dwordx8 s[40:47], s[0:1], 48")
        a("s_load_dwordx2 s[48:49], s[0:1], 80")
        a("s_cmp_ge_u32 s2, 256")
        a("s_cbranch_scc1 L_end")
        a("s_getpc_b64 s[6:7]")
        a.label("L_pc")
        a("s_bfe_u32 s50, s2, 0x30003")
        a("s_lshl_b32 s50, s50, 12")
        a("v_lshrrev_b32 v1, 6, v0")
        a("v_and_b32 v2, 63, v0")
        a("v_lshl_add_u32 v3, v1, 2, v2")
        a("v_lshl_add_u32 v3, v3, 7, s50")
        a(f"v_readfirstlane_b32 s{sWV}, v1")
        a("s_mov_b64 exec, 15")
        a("global_load_dword v1, v3, s[6:7]")
        a("s_mov_b64 exec, -1")
        if self.mapping.startswith("b"):
            lb = {"b4": 2, "b2": 1}[self.mapping]
            a("s_lshr_b32 s50, s2, 3")
            a(f"s_and_b32 s51, s2, {(1 << lb) - 1}")
            a("s_mul_i32 s52, s51, 28"); a("s_add_u32 s52, s52, s50")
            a(f"s_lshr_b32 s{sJ}, s52, {2+lb}")
            a(f"s_and_b32 s52, s52, {(4 << lb) - 1}")
            a("s_lshl2_add_u32 s51, s51, s50"); a("s_sub_u32 s51, s51, 28")
            a("s_cmp_ge_u32 s50, 28")
            a(f"s_cselect_b32 s{sJ}, 7, s{sJ}")
            a("s_cselect_b32 s50, s51, s52")
            a(f"s_bfe_u32 s51, s2, {hex(((3 - lb) << 16) | lb)}")
            a(f"s_lshl_b32 s{sR}, s50, {3-lb}"); a(f"s_or_b32 s{sR}, s{sR}, s51")
        else:
            m = int(self.mapping); lb = {8: 3, 4: 2, 2: 1, 1: 0}[m]
            a(f"s_and_b32 s{sJ}, s2, {m-1}")
            a(f"s_lshr_b32 s50, s2, {5+lb}")
            a(f"s_lshl_b32 s50, s50, {lb}")
            a(f"s_or_b32 s{sJ}, s{sJ}, s50")
            a(f"s_bfe_u32 s{sR}, s2, {hex((5 << 16) | lb)}")
            a(f"s_lshr_b32 s50, s{sR}, {3-lb}")
        nk = self.opt["nk"]
        if self.opt["kj"]: nk = 0; a(f"s_min_u32 s{sK}, s{sJ}, 6")
        if nk == 1: a(f"s_mov_b32 s{sK}, 0")
        elif nk == 2: a("s_and_b32 s51, s50, 1"); a(f"s_mul_i32 s{sK}, s51, 3")
        elif nk == 4: a("s_and_b32 s51, s50, 3"); a(f"s_lshl_b32 s{sK}, s51, 1")
        if self.opt["refl"]:
            a(f"s_sub_u32 s50, 32, s{sR}"); a(f"s_min_u32 s50, s50, s{sR}"); a("s_lshr_b32 s50, s50, 1")
        a(f"s_add_u32 s50, s50, s{sJ}")
        a("s_mul_i32 s51, s50, 37")
        a("s_lshr_b32 s51, s51, 8")
        a("s_mul_i32 s51, s51, 7")
        a(f"s_sub_u32 s{sC}, s50, s51")
        if self.opt["refl"]:
            a(f"s_sub_u32 s51, 6, s{sC}"); a(f"s_cmp_gt_u32 s{sR}, 16"); a(f"s_cselect_b32 s{sC}, s51, s{sC}")
        if nk == 7: a(f"s_mov_b32 s{sK}, s{sC}")
        a("v_and_b32 v6, 7, v0")
        a(f"s_mov_b32 s{SX+2}, {2048*896}")
        a(f"s_mov_b32 s{SX+3}, 0x00020000")
        a(f"s_cmp_eq_u32 s{sJ}, 7")
        a("s_cbranch_scc1 L_dft")
        a(f"s_cmp_lt_u32 s{sWV}, 4")
        a("s_cbranch_scc1 L_compute")

    def ws_srd(self, a):
        if self.opt["wo"]:
            a.lines.append(f"    s_add_u32 s48, s48, {self.opt['wo'] << 20}\n    s_addc_u32 s49, s49, 0")
        srd(a, SW, 48, WS_BYTES)

    def tile_order(self, a):
        a(f"s_lshl_b32 s52, s{sC}, 7")
        for k in range(1, 7):
            a.lines.append(f"    s_add_u32 s{52+k}, s{51+k}, 128\n    s_cmp_eq_u32 s{52+k}, 896\n    s_cselect_b32 s{52+k}, 0, s{52+k}")

    def ximg_waddr(self):
        a = self.a
        a("v_lshrrev_b32 v8, 2, v6")
        a("v_and_b32 v11, 3, v6")
        a("v_mad_u32_u24 v9, v8, 12, v11")
        a("v_and_b32 v13, 15, v5")
        a("v_xor_b32 v9, v9, v13")
        a("v_lshlrev_b32 v9, 4, v9")
        a("v_lshl_add_u32 v9, v11, 8, v9")
        a("v_lshl_add_u32 v9, v8, 12, v9")
        a("v_lshrrev_b32 v13, 4, v5")
        a("v_lshl_add_u32 v9, v13, 10, v9")

    def ximg_raddr(self, d0, d1, base):
        a = self.a
        a("v_and_b32 v8, 15, v2")
        a("v_lshrrev_b32 v11, 4, v2")
        a(f"v_xor_b32 v{d0}, v8, v11")
        a(f"v_lshlrev_b32 v{d0}, 4, v{d0}")
        a(f"v_lshl_add_u32 v{d0}, v11, 8, v{d0}")
        a(f"v_xor_b32 v{d1}, {12*16}, v{d0}")
        if base: a(f"v_add_u32 v{d0}, {base}, v{d0}")
        a(f"v_add_u32 v{d1}, {base+4096}, v{d1}")

    def ln_stats(self, sets):
        l = []
        for pat in ("quad_perm:[1,0,3,2]", "quad_perm:[2,3,0,1]", "row_half_mirror"):
            for m, s_, q in sets:
                l.append(f"v_add_f32_dpp v{s_}, v{s_}, v{s_} {pat} row_mask:0xf bank_mask:0xf")
                l.append(f"v_add_f32_dpp v{q}, v{q}, v{q} {pat} row_mask:0xf bank_mask:0xf")
            if len(sets) == 1: l.append("s_nop 0")
        for m, s_, q in sets:
            l += [f"v_mul_f32 v{m}, {f32(-1/448)}, v{s_}", f"v_mul_f32 v{q}, {f32(1/448)}, v{q}", f"v_fma_f32 v{q}, -v{m}, v{m}, v{q}",
                  f"v_max_f32 v{q}, 0, v{q}", f"v_add_f32 v{q}, {f32(1e-5)}, v{q}", f"v_rsq_f32 v{s_}, v{q}"]
        return l

    def compute(self):
        a = self.a; sp = self.spread
        WF = [16, 32]; XF = [48, 64]; ACC = 128; AC2 = [48, 64]; HT = 80
        WA, XA, W2, HA, PA, HW, W2X = 112, 120, 122, 124, 125, 126, 127
        CS, XS, SPA, SPI, CA, MB = 192, 200, 208, 212, 216, 224
        FA, FB = 13, 5
        sP, sF = 4, 50
        def HF(k, t): return (192 if k % 2 == 0 else 128) + ((k // 2)*4 + t)*4
        def PK(tau): return 80 + 8*(tau % 4)
        self.tr.reset()
        a("s_waitcnt lgkmcnt(0)")
        self.ws_srd(a)
        a(f"s_cmp_lg_u32 s{sWV}, 0")
        a("s_cbranch_scc1 L_noclean")
        MS, GO = self.opt["ms"], self.opt["go"]
        a(f"s_mul_i32 s64, s{sR}, 7"); a(f"s_add_u32 s64, s64, s{sC}"); a(f"s_mul_i32 s64, s64, {MS}"); a(f"s_add_u32 s64, s64, {MBOX}")
        a(f"v_mul_u32_u24 v3, {GO}, v2")
        a("v_mov_b32 v4, 0")
        a("s_mov_b64 exec, 3")
        a(f"buffer_store_dword v4, v3, s[{SW}:{SW+3}], s64 offen sc1")
        a("s_mov_b64 exec, -1")
        a.label("L_noclean")
        self.tile_order(a)
        a("v_mov_b32 v12, 0xffff0000")
        for i in range(20): a(f"v_mov_b32 v{CS+i}, 0")
        a(f"v_mov_b32 v{SPI}, 0x4444"); a(f"v_mov_b32 v{SPI+1}, 0x4444")
        a("s_mov_b32 exec_lo, 0x11111111"); a("s_mov_b32 exec_hi, 0x22222222")
        for i in range(4): a(f"v_mov_b32 v{SPA+i}, 0x3f803f80")
        a("s_mov_b32 exec_lo, 0xf0f0f0f0"); a("s_mov_b32 exec_hi, 0xf0f0f0f0")
        a(f"v_mov_b32 v{SPI}, 0xeeee")
        a("s_mov_b32 exec_lo, 0xff00ff00"); a("s_mov_b32 exec_hi, 0xff00ff00")
        a(f"v_mov_b32 v{SPI+1}, 0xeeee")
        a("s_mov_b64 exec, -1")
        a("v_lshrrev_b32 v3, 2, v2")
        a("v_lshlrev_b32 v3, 7, v3")
        a("v_and_b32 v4, 3, v2")
        a("v_lshl_add_u32 v3, v4, 3, v3")
        a("v_bfe_u32 v4, v2, 3, 2")
        a("v_lshl_add_u32 v3, v4, 5, v3")
        a(f"s_lshl_b32 s64, s{sWV}, 12")
        a(f"s_lshl_b32 s65, s{sWV}, 5")
        for u in range(4):
            a(f"v_xor_b32 v{WA+u}, {32*u}, v3")
            a(f"v_add_u32 v{WA+u}, s64, v{WA+u}")
            a(f"v_add_u32 v{WA+4+u}, 0x10000, v{WA+u}")
        a(f"v_xor_b32 v{W2}, s65, v3")
        a(f"v_add_u32 v{W2+1}, 0x10000, v{W2}")
        a(f"v_add_u32 v{W2X}, 0x20000, v{W2}")
        a("v_and_b32 v8, 15, v2")
        a("v_lshrrev_b32 v4, 4, v2")
        a(f"v_xor_b32 v{XA}, v4, v6")
        a(f"v_lshlrev_b32 v{XA}, 4, v{XA}")
        a(f"v_lshl_add_u32 v{XA}, v8, 7, v{XA}")
        a(f"v_add_u32 v{XA}, {XIMG}, v{XA}")
        a(f"v_xor_b32 v{XA+1}, 64, v{XA}")
        a(f"v_lshlrev_b32 v{HA}, 4, v2")
        a(f"s_lshl_b32 s64, s{sWV}, 13")
        a(f"v_add_u32 v{HW}, s64, v{HA}")
        a(f"s_mul_i32 s64, s{sR}, 344064"); a(f"s_lshl_b32 s65, s{sWV}, 11"); a("s_add_u32 s64, s64, s65")
        a(f"s_add_u32 s64, s64, {PBASE}")
        a(f"v_lshl_add_u32 v{PA}, v2, 4, s64")
        a(f"s_mul_i32 s64, s{sR}, {7*MS}"); a(f"s_add_u32 s64, s64, {MBOX}")
        for t in range(6):
            a(f"s_mul_i32 s{sP+t}, s{53+t}, 384"); a(f"s_add_u32 s{sP+t}, s{sP+t}, {8192*t}")
        for t in range(6):
            a(f"s_mul_i32 s{sF+t}, s{53+t}, {MS//128}"); a(f"s_add_u32 s{sF+t}, s{sF+t}, s64")
        a(f"v_lshlrev_b32 v{FA}, 25, v2")
        a(f"s_lshl_b32 s64, 1, s{sWV}")
        for t in range(6): a(f"v_lshlrev_b32_e64 v{FB+t}, {4*t}, s64")
        a("s_waitcnt vmcnt(0)")

        def ring(pair):
            p = pair % 3
            return (1, 0) if p == 2 else (0, p*32768)
        def wrd(pair, half, u):
            hi, off = ring(pair)
            return [f"ds_read_b64_tr_b16 {vr(WF[half]+4*u+2*h, 2)}, v{WA+4*hi+u} offset:{off + half*16384 + h*2048}" for h in range(2)]
        def xrd(pair, half, t):
            return f"ds_read_b128 {vr(XF[half]+4*t)}, v{XA+half} offset:{pair*8192 + t*2048}"
        def rd_even(p):
            x = [xrd(p, 0, t) for t in range(4)]
            return [x[0]] + wrd(p, 0, 0) + x[1:] + wrd(p, 0, 1) + wrd(p, 0, 2) + wrd(p, 0, 3)
        def rd_odd(p):
            return wrd(p, 1, 0) + wrd(p, 1, 1) + [xrd(p, 1, t) for t in range(4)] + wrd(p, 1, 2) + wrd(p, 1, 3)
        def m1(half, u, t, zero=False):
            return mfma(ACC + (u*4+t)*4, WF[half]+4*u, XF[half]+4*t, "0" if zero else None)
        def smf(half, v):
            return f"v_smfmac_f32_16x16x64_bf16 {vr(CS+4*v)}, {vr(SPA)}, {vr(WF[half]+8*v, 8)}, v{SPI}"
        def mu(half, u, zero=False):
            return [m1(half, u, t, zero) for t in range(4)]
        def smx(half, v):
            return f"v_smfmac_f32_16x16x64_bf16 {vr(XS+4*v)}, {vr(SPA)}, {vr(XF[half]+8*v, 8)}, v{SPI+1}"
        def mm1(half, zero=False):
            return (mu(half, 0, zero) + mu(half, 1, zero) + [smf(half, 0), smx(half, 0)]
                    + mu(half, 2, zero) + mu(half, 3, zero) + [smf(half, 1), smx(half, 1)])
        def csprep(v):
            l = []
            for i in range(2):
                c = CS + 4*v + i; o = CA + 2*(2*v+i)
                l += [f"v_mul_f32 v{c}, {f32(-1/448)}, v{c}", f"v_cvt_pk_bf16_f32 v{o}, v{c}, v{c}", f"v_and_b32 v3, v12, v{o}",
                      f"v_sub_f32 v3, v{c}, v3", f"v_cvt_pk_bf16_f32 v{o}, v{c}, v3", f"v_mov_b32 v{o+1}, v{o}"]
            return l
        def mprep():
            l = []
            for t in range(4):
                c = XS + 4*(t//2) + t%2; o = MB + 2*t
                l += [f"v_cvt_pk_bf16_f32 v{o}, v{c}, v{c}", f"v_and_b32 v3, v12, v{o}", f"v_sub_f32 v3, v{c}, v3", f"v_cvt_pk_bf16_f32 v{o+1}, v3, v3"]
            return l
        def r1(v):
            return [f"v_mfma_f32_16x16x16_bf16 {vr(ACC+(u*4+t)*4)}, {vr(CA+2*u, 2)}, {vr(MB+2*t, 2)}, {vr(ACC+(u*4+t)*4)}"
                    for t in range(4) for u in (2*v, 2*v+1)]
        def w2rd(pair, k):
            sl = slot(pair)
            reg, off = [W2, W2+1, W2X][sl >> 16], sl & 0xffff
            return [f"ds_read_b64_tr_b16 {vr(WF[k%2]+4*(k//2)+2*h, 2)}, v{reg} offset:{off + k*4096 + h*2048}" for h in range(2)]
        def m2(tau, k):
            return [mfma(AC2[tau % 2]+4*t, WF[k%2]+4*(k//2), HF(k, t), "0" if k == 0 else None) for t in range(4)]
        def mm2(tau, par):
            return [m for k in range(par, 8, 2) for m in m2(tau, k)]
        def hrd(k):
            return [f"ds_read_b128 {vr(HF(k, t))}, v{HA} offset:{k*4096 + t*1024}" for t in range(4)]
        def endpair():
            a("s_waitcnt lgkmcnt(0)"); self.bar()

        self.stamp(1)
        self.bar()
        self.stamp(2)
        for r in rd_even(0): a(r)
        self.bar()
        ro = rd_odd(0)
        for r in ro[:3]: a(r)
        self.run(mm1(0, True), sp({}, ro[3:], 0))
        endpair()
        def reads(p):
            f = sp({}, rd_even(p), 0); sp(f, rd_odd(p)[:4], 13); sp(f, rd_odd(p)[4:], 20)
            return f
        for p in range(1, 6):
            self.run(mm1(1) + mm1(0), reads(p), look=10)
            endpair()
        self.stamp(3)
        def epi(v, t):
            o = HT + 4*(v*4+t); l = []
            for i in range(2):
                s = ACC + ((2*v+i)*4+t)*4
                l.append(f"v_cvt_pk_bf16_f32 v{o+2*i}, v{s}, v{s+1}")
                l.append(f"v_cvt_pk_bf16_f32 v{o+2*i+1}, v{s+2}, v{s+3}")
            for i in range(4):
                l.append(f"v_pk_max_i16 v{o+i}, v{o+i}, 0")
            return l
        ms = (mm1(1) + mu(0, 0) + mu(0, 1) + [smf(0, 0), smx(0, 0), smx(0, 1), smf(1, 0), smx(1, 0), smx(1, 1)]
              + mu(1, 0) + mu(1, 1) + mu(0, 2) + mu(0, 3) + [smf(0, 1), smf(1, 1)]
              + r1(0) + mu(1, 2) + mu(1, 3) + r1(1))
        f = reads(6)
        f.setdefault(self.opt["xb"], []).append(endpair)
        sp(f, ["s_nop 2", "s_nop 2"], 35); sp(f, csprep(0) + mprep(), 37, 2)
        e0 = [x for t in range(4) for x in epi(0, t)]
        sp(f, [x for k in (0, 2, 4, 6, 1, 3) for x in w2rd(7, k)], 51); sp(f, w2rd(7, 5) + w2rd(7, 7), 68)
        sp(f, e0[:3], 57); sp(f, csprep(1)[:3], 60); sp(f, csprep(1)[3:], 63, 3); sp(f, e0[3:7], 66, 2); sp(f, e0[7:23], 68, 2)
        self.run(ms, f, look=3)
        for x in e0[23:] + [x for t in range(4) for x in epi(1, t)]: a(x)
        self.bar()
        self.stamp(4)
        for v in range(2):
            for t in range(4): a(f"ds_write_b128 v{HW}, {vr(HT + 4*(v*4+t))} offset:{v*4096 + t*1024}")
        endpair()
        hr = [x for k in (0, 2, 4, 6, 1, 3, 5, 7) for x in hrd(k)]
        for r in hr[:10]: a(r)
        f = sp({}, hr[10:], 0); sp(f, [x for k in (0, 2, 4, 6) for x in w2rd(8, k)], 22)
        f.setdefault(31, []).append(self.bar)
        self.run(mm2(0, 0) + mm2(0, 1), f)
        self.stamp(5)

        def store(tau, p):
            def g():
                a(f"buffer_store_dwordx4 {vr(PK(tau)+4*p)}, v{PA}, s[{SW}:{SW+3}], s{sP+tau} offen offset:{1024*p} sc1")
                self.tag(f"S{tau}")
            return g
        def cvts(tau):
            s = AC2[tau % 2]
            return [f"v_cvt_pk_bf16_f32 v{PK(tau)+i}, v{s+2*i}, v{s+2*i+1}" for i in range(8)]
        def flag(tau):
            def g():
                self.wv([f"S{tau}"])
                a(f"buffer_atomic_or v{FB+tau}, v{FA}, s[{SW}:{SW+3}], s{sF+tau} offen sc1")
                if tau in (0, 5): self.stamp(7 if tau == 0 else 8)
            return g
        g0 = 32*(self.opt["sfirst"] - 9) + 16
        f = {}; ms = []; late = []
        for tau in range(1, 7):
            pair = 7 + tau; b = 32*(tau-1)
            if tau == 1: sp(f, [x for k in (1, 3, 5, 7) for x in w2rd(pair, k)], b)
            else: sp(f, w2rd(pair, 7), b)
            sp(f, cvts(tau-1), b+2, 1 if tau == 1 else 2)
            if tau < 6:
                if tau < self.opt["lastb"] - 7: f.setdefault(b+15, []).append(endpair)
                sp(f, [x for k in (0, 2, 4, 6) for x in w2rd(pair+1, k)], b+16)
                sp(f, [x for k in (1, 3, 5) for x in w2rd(pair+1, k)], b+24)
            ms += mm2(tau, 0) + mm2(tau, 1)
        for t in range(6):
            g = max(g0 + 4*t, 32*t + (10 if t == 0 else 6))
            f.setdefault(g, []).append(store(t, 0)); f.setdefault(g+2, []).append(store(t, 1))
            g += self.opt["lag"]
            if g < 190: f.setdefault(g, []).append(flag(t))
            else: late.append(flag(t))
        sp(f, [f"s_lshl_b32 s64, s{sWV}, 12", f"s_add_u32 s64, s64, {OWN}", f"v_add_u32 v3, s64, v{HA}"], 172)
        self.run(ms, f, look=8)
        self.stamp(6)
        a("s_nop 4")
        for t in range(4):
            a(f"ds_write_b128 v3, {vr(AC2[0]+4*t)} offset:{t*1024}")
        for g in late: g()
        a("s_waitcnt lgkmcnt(0)")
        self.bar()
        self.stamp_out(9)
        a("s_endpgm")

    def helper(self, part):
        a = self.a
        A1, A2, AX = 112, 116, 126
        TW = 128
        sU, sM0, sOff, sXo, sMX = 50, 51, 59, 60, 61
        sPp, sHh, sMir, sGA, sGB, sNext, sG = 36, 37, 38, 39, 4, 5, 6
        def dma(stage, i):
            def g():
                pair, half = stage // 2, stage % 2
                if i == 0:
                    a(f"s_add_u32 m0, s{sM0}, {slot(pair) + half*16384}")
                    if pair < 7:
                        if half == 0: a(f"s_mul_i32 s{sOff}, s{sXo}, {64*3584//128}")
                        else: a(f"s_add_u32 s{sOff}, s{sOff}, {32*3584}")
                    else:
                        a(f"s_add_u32 s{sOff}, s{52 + (pair-6) % 7}, {half*128*896}")
                if pair < 7: a(f"buffer_load_dwordx4 v{A1+i}, s[{SA}:{SA+3}], s{sOff} offen offset:{1024*i} {['', 'nt', 'sc1'][self.opt['wf']]} lds")
                else: a(f"buffer_load_dwordx4 v{A2+i}, s[{SB}:{SB+3}], s{sOff} offen offset:{1024*i} lds")
                self.tag(f"D{stage}")
            return g
        def xdma(p, h):
            def g():
                a(f"s_add_u32 m0, s{sMX}, {XIMG + p*8192 + h*4096}")
                if h == 0 and p > 0:
                    a(f"s_add_u32 s{sXo}, s{sXo}, 128"); a(f"s_cmp_eq_u32 s{sXo}, 896"); a(f"s_cselect_b32 s{sXo}, 0, s{sXo}")
                else: a("s_nop 0")
                a(f"buffer_load_dwordx4 v{AX+h}, s[{SX}:{SX+3}], s{sXo} offen {['', 'nt', 'sc1'][self.opt['xf']]} lds")
            return g
        def dmas(*stages):
            l = []
            for s in stages:
                if 1 < s < 14: l.append(xdma(s // 2, s % 2))
                l += [dma(s, i) for i in range(4)]
            return l
        if part == 0:
            self.tr.reset()
            a(f"s_sub_u32 s{sU}, s{sWV}, 4")
            a("v_bfe_u32 v5, v0, 3, 5")
            a(f"v_lshl_add_u32 v7, v5, 6, s{sR}")
            a("v_mul_u32_u24 v7, 896, v7")
            a("v_lshrrev_b32 v8, 3, v2")
            a("v_xor_b32 v8, v8, v6")
            a(f"v_lshl_add_u32 v{AX}, v8, 4, v7")
            a(f"v_add_u32 v{AX+1}, {32*896}, v{AX}")
            a("v_lshrrev_b32 v3, 4, v2")
            a("v_lshlrev_b32 v3, 1, v3")
            a("v_xor_b32 v3, v3, v6")
            a("v_lshlrev_b32 v13, 4, v3")
            a("v_bfe_u32 v4, v2, 3, 2")
            a("v_lshrrev_b32 v8, 5, v2")
            a("v_lshl_add_u32 v4, v8, 3, v4")
            a("v_mul_u32_u24 v4, 3584, v4")
            a(f"s_lshl_b32 s62, s{sJ}, 9"); a(f"s_lshl_b32 s63, s{sU}, 7"); a("s_add_u32 s62, s62, s63")
            a(f"v_add3_u32 v{A1}, v13, v4, s62")
            for i in range(1, 4):
                a(f"v_add_u32 v{A1+i}, {(16*(i&1) + 4*(i>>1))*3584 - 1024*i}, v{A1}")
            a(f"s_lshl_b32 s{sM0}, s{sU}, 12")
            a(f"s_lshl_b32 s{sMX}, s{sU}, 10")
            a(f"s_lshl_b32 s{sXo}, s{sK}, 7")
            a(f"s_mov_b32 s{SA+2}, {448*1792*2}")
            a(f"s_mov_b32 s{SA+3}, 0x00020000")
            a("s_waitcnt lgkmcnt(0)")
            a(f"s_mov_b32 s{SX}, s4")
            a(f"s_and_b32 s{SX+1}, s5, 0xffff")
            a(f"s_mov_b32 s{SA}, s40")
            a(f"s_and_b32 s{SA+1}, s41, 0xffff")
            for d in [xdma(0, 0), xdma(0, 1)] + dmas(0, 1): d()
            a("s_branch L_helper2")
            self.helper_vm = [set(e) for e in self.tr.vm]
            return
        a.label("L_helper2")
        self.tr.lds, self.tr.vm = [], self.helper_vm
        def mix(ds, work, per):
            work = list(work)
            for d in ds:
                d()
                for _ in range(per):
                    if work: self.emit(work.pop(0))
            for w in work: self.emit(w)

        b = Asm()
        self.tile_order(b)
        b("v_mov_b32 v12, 0xffff0000")
        b("v_lshrrev_b32 v4, 3, v2")
        b(f"s_lshl_b32 s62, s{sJ}, 8"); b(f"s_lshl_b32 s63, s{sU}, 5"); b("s_add_u32 s62, s62, s63")
        b("v_add_u32 v4, s62, v4")
        b("v_mul_u32_u24 v4, 896, v4")
        b(f"v_add_u32 v{A2}, v13, v4")
        for i in range(1, 4):
            b(f"v_add_u32 v{A2+i}, {8*896*i - 1024*i}, v{A2}")
        srd(b, SB, 42, 448*1792*2)
        self.ws_srd(b)
        srd(b, SO, 44, 2048*896)
        b(f"s_and_b32 s{sPp}, s{sU}, 1"); b(f"s_lshr_b32 s{sHh}, s{sU}, 1")
        b(f"s_lshl_b32 s64, s{sPp}, 12"); b(f"s_add_u32 s64, s64, {OUTT}"); b(f"s_lshl_b32 s65, s{sHh}, 2")
        b("v_lshrrev_b32 v3, 5, v2"); b("v_add_u32 v3, s65, v3"); b("v_xor_b32 v3, v3, v6")
        b("v_lshlrev_b32 v3, 4, v3"); b("v_bfe_u32 v4, v2, 4, 1"); b("v_lshl_add_u32 v3, v4, 3, v3")
        b("v_and_b32 v4, 15, v2"); b("v_lshl_add_u32 v3, v4, 7, v3")
        b("v_xor_b32 v4, 32, v3"); b("v_add_u32 v109, s64, v3"); b("v_add_u32 v110, s64, v4")
        b(f"s_add_u32 s64, s{sC}, 7"); b(f"s_sub_u32 s64, s64, s{sK}"); b("s_sub_u32 s65, s64, 7")
        b.lines.append("s_cmp_ge_u32 s64, 7\ns_cselect_b32 s64, s65, s64"); b("s_lshl_b32 s64, s64, 13")
        b(f"s_sub_u32 s64, s64, {OUTT - XIMG}")
        b("v_add_u32 v98, s64, v109"); b("v_add_u32 v99, s64, v110")
        b("s_mov_b32 s66, 0"); b(f"s_lshl_b32 s68, s{sR}, 2")
        early = len(b.lines)
        b(f"s_lshl_b32 s62, s{sC}, 1"); b(f"s_add_u32 s62, s62, s{sHh}")
        b(f"s_lshl_b32 s63, s{sPp}, 5"); b(f"s_add_u32 s63, s63, s{sR}")
        b("s_sub_u32 s64, 13, s62"); b("s_sub_u32 s65, 14, s62")
        b.lines.append("s_cmp_eq_u32 s65, 7\ns_cselect_b32 s65, 0, s65")
        b("s_sub_u32 s66, 64, s63"); b("s_and_b32 s66, s66, 63")
        b.lines.append(f"s_cmp_ge_u32 s62, 7\ns_cselect_b32 s{sMir}, 1, 0\ns_cselect_b32 s64, s64, s62\ns_cselect_b32 s65, s65, s62\n"
                       "s_cselect_b32 s66, s66, s63\ns_cselect_b32 s67, -1.0, 1.0")
        b("s_mul_i32 s66, s66, 7")
        b(f"s_add_u32 s{sGA}, s66, s64"); b(f"s_add_u32 s{sGB}, s66, s65")
        b(f"s_lshl_b32 s{sGA}, s{sGA}, 12"); b(f"s_lshl_b32 s{sGB}, s{sGB}, {7 if self.opt['c0'] else 12}")
        b(f"s_add_u32 s{sGA}, s{sGA}, {GBASE}"); b(f"s_add_u32 s{sGB}, s{sGB}, {C0BASE if self.opt['c0'] else GBASE}")
        b.lines.append(f"s_cmp_eq_u32 s{sMir}, 1\ns_cselect_b32 s{sGB}, s{sGB}, {OOB}")
        b("v_and_b32 v123, 15, v2"); b("v_lshlrev_b32 v123, 4, v123"); b(f"s_lshl_b32 s7, s{sPp}, 3"); b("v_add_u32 v123, s7, v123")
        MS, GO = self.opt["ms"], self.opt["go"]
        b(f"s_mul_i32 s7, s{sR}, {7*MS}"); b(f"s_add_u32 s7, s7, {MBOX}")
        b(f"s_mul_i32 s40, s{sC}, {MS}"); b("s_add_u32 s40, s40, s7"); b(f"s_add_u32 s7, s7, {GO}")
        b(f"s_mul_i32 s41, s64, {MS}"); b("s_add_u32 s41, s41, s7"); b(f"s_mul_i32 s42, s65, {MS}"); b("s_add_u32 s42, s42, s7")
        b(f"s_lshl_b32 s43, s{sR}, 8"); b(f"s_add_u32 s43, s43, {STATS}")
        b("v_lshlrev_b32 v103, 4, v2")
        b(f"s_mul_i32 s64, s{sR}, 344064"); b(f"s_mul_i32 s65, s{sC}, 49152"); b("s_add_u32 s64, s64, s65")
        b(f"s_lshl_b32 s65, s{sHh}, 12"); b("s_add_u32 s64, s64, s65")
        b(f"s_lshl_b32 s65, s{sPp}, 10"); b("s_add_u32 s64, s64, s65"); b(f"s_add_u32 s64, s64, {PBASE}")
        b("v_add_u32 v102, s64, v103")
        b("v_and_b32 v3, 3, v2"); b("v_cmp_eq_u32 vcc, 0, v3")
        b.lines.append(f"s_cmp_eq_u32 s62, 0\ns_cselect_b32 s64, 1, s{sMir}"); b("s_mul_i32 s64, s64, 0xffff")
        b("v_mov_b32 v3, s64"); b("v_lshrrev_b32 v105, 2, v2"); b(f"v_lshlrev_b32 v105, {1 if self.opt['c0'] else 6}, v105")
        b("v_cndmask_b32 v104, 0, v3, vcc")
        for rt in range(2):
            b("v_and_b32 v3, 15, v2")
            b(f"v_lshl_add_u32 v3, v3, 6, s63")
            if rt: b("v_add_u32 v3, 1024, v3")
            b("v_lshrrev_b32 v4, 4, v2"); b("v_lshlrev_b32 v4, 3, v4")
            b("v_mul_u32_u24 v4, v4, v3")
            b("v_cvt_f32_u32 v3, v3"); b("v_cvt_f32_u32 v4, v4")
            b(f"v_mul_f32 v3, {f32(1/2048)}, v3"); b(f"v_mul_f32 v4, {f32(1/2048)}, v4")
            b("v_mul_f32 v3, s67, v3"); b("v_mul_f32 v4, s67, v4")
            for q in range(8):
                b(f"v_fract_f32 v8, v4")
                b(f"v_cos_f32 v{16+q}, v8")
                b(f"v_sin_f32 v{24+q}, v8")
                b("v_add_f32 v4, v4, v3")
            for i in range(4):
                b(f"v_cvt_pk_bf16_f32 v{TW+4*rt+i}, v{16+2*i}, v{17+2*i}")
                b(f"v_cvt_pk_bf16_f32 v{TW+8+4*rt+i}, v{24+2*i}, v{25+2*i}")
        b(f"s_lshl_b32 s64, s{sU}, 12"); b(f"s_add_u32 s64, s64, {GST}")
        b("v_add_u32 v106, s64, v103")
        b("v_lshrrev_b32 v3, 4, v2"); b("v_bfe_u32 v4, v2, 2, 2"); b("v_lshl_add_u32 v3, v3, 3, v4")
        b("v_and_b32 v4, 3, v2"); b("v_lshlrev_b32 v4, 3, v4"); b("v_lshl_add_u32 v3, v3, 7, v4")
        b("v_add_u32 v107, s64, v3")
        b(f"s_lshl_b32 s64, s{sHh}, 13"); b(f"s_lshl_b32 s65, s{sPp}, 11"); b("s_add_u32 s64, s64, s65")
        b(f"s_add_u32 s64, s64, {OWN}"); b("v_add_u32 v108, s64, v103")
        b(f"s_lshl_b32 s64, s{sPp}, 12"); b(f"s_add_u32 s64, s64, {OUTT}"); b(f"s_lshl_b32 s65, s{sHh}, 2")
        b("v_and_b32 v3, 3, v2"); b("v_add_u32 v3, s65, v3"); b("v_bfe_u32 v4, v2, 2, 3"); b("v_xor_b32 v4, v3, v4")
        b("v_lshrrev_b32 v8, 2, v2"); b("v_lshlrev_b32 v4, 4, v4"); b("v_lshl_add_u32 v4, v8, 7, v4")
        b("v_add_u32 v111, s64, v4")
        b("v_lshl_add_u32 v8, v8, 6, s63"); b("v_mul_u32_u24 v8, 896, v8"); b("v_lshl_add_u32 v8, v3, 4, v8")
        b(f"s_lshl_b32 s64, s{sC}, 7"); b("v_add_u32 v120, s64, v8")
        b("v_xor_b32 v121, 48, v2"); b("v_add_u32 v122, 16, v121"); b("v_and_b32 v122, 63, v122")
        b("v_lshlrev_b32 v121, 2, v121"); b("v_lshlrev_b32 v122, 2, v122")
        b("s_mov_b32 s62, 0x00003f80"); b("s_mov_b32 s63, 0x3f800000")
        b(f"s_lshl_b32 s64, s{sHh}, 1"); b("s_lshl_b32 s64, 3, s64")
        b(f"s_mov_b32 s{sNext}, 0"); b(f"s_mov_b32 s{sG}, 0")
        XR, XU = 192, 200
        for i in range(8):
            b(f"v_lshlrev_b32 v{XU+2*i}, 16, v{XR+i}")
            b(f"v_and_b32 v{XU+2*i+1}, v12, v{XR+i}")
        setup = b.lines
        def work(n):
            nonlocal setup
            w = setup[:n]; setup = setup[n:]
            return w
        mix(dmas(2), [], 0)
        self.stamp(1)
        mix([], work(early), 0)
        self.wv(["D0"]); self.bar()
        self.stamp(2)
        mix(dmas(3), [], 0)
        if "trace" in self.abl:
            a("v_mov_b32 v4, 1"); a("v_lshlrev_b32 v3, 12, v0"); a("v_subrev_u32 v3, 0x100000, v3")
            srd(a, SD, 46, 256)
            a(f"buffer_atomic_add v4, v3, s[{SD}:{SD+3}], s68 offen sc1")
        else:
            a(f"s_cmp_lg_u32 s{sU}, 0")
            a("s_cbranch_scc1 L_noready")
            a("s_mov_b32 s69, 1")
            a("s_atomic_add s69, s[46:47], s68")
            a.label("L_noready")
        self.wv(["D1"]); self.bar()
        mix(dmas(4, 5), [], 0)
        self.wv(["D3"]); self.bar()

        for p in range(1, 6):
            mix(dmas(2*p+4, 2*p+5), [], 0)
            self.wv([f"D{2*p+3}"]); self.bar()
        o = self.opt
        for ct in range(2):
            for rt in range(2):
                a(f"ds_read_b64 {vr(XR+(ct*2+rt)*2, 2)}, v{98+ct} offset:{rt*2048}")
        nxt = [16]
        def issue(n, limit):
            st = list(range(nxt[0], min(nxt[0] + n, limit))); nxt[0] += len(st)
            mix(dmas(*st), [], 0)
        issue(2, 18)
        self.wv(["D15"], True); self.bar()
        issue(o["e9"], 22)
        a("s_load_dword s69, s[46:47], s68")
        mix([], work(o["wx"]), 0)
        a("s_waitcnt vmcnt(0)"); self.bar()
        mix([], work(o["wd"]), 0)
        issue(o["nw"], 22)
        self.bar()
        issue(o["nh"], 24)
        a.label("L_rdy")
        a("s_waitcnt lgkmcnt(0)")
        a("s_cmp_ge_u32 s69, 7")
        a("s_cbranch_scc1 L_rdy_ok")
        a("s_load_dword s69, s[46:47], s68 glc")
        a("s_add_u32 s66, s66, 1")
        a(f"s_cmp_lt_u32 s66, {SPIN}")
        a("s_cbranch_scc1 L_rdy")
        a.label("L_rdy_ok")
        self.bar()
        issue(o["n8"], 26)
        self.wv(["D19"]); self.bar()
        issue(o["n9"], 28)
        self.wv(["D21"]); self.bar()
        issue(9, 28)
        self.stamp(3)
        if o["lastb"] == 12:
            mix([], work(40), 0)
            self.wv(["D23"]); self.bar()
            mix([], work(60), 0)
        self.wv(["D27"]); self.bar()
        mix([], work(300), 0)
        PD, SUM, GD, GP, GF, Y, Y2, OW = 144, 16, 32, 48, 52, 68, 84, 216
        cnt = [0]
        def poll():
            a("s_load_dword s52, s[48:49], s40 glc")
        def wait_flag(tau):
            n = cnt[0]; cnt[0] += 1
            a(f"s_lshl_b32 s56, s64, {4*tau}")
            a("s_andn2_b32 s65, s56, s55")
            a(f"s_cbranch_scc0 L_wf{n}_ok")
            a.label(f"L_wf{n}")
            a.lines.append("    s_waitcnt lgkmcnt(0)")
            a("s_or_b32 s55, s55, s52")
            a("s_andn2_b32 s65, s56, s55")
            a(f"s_cbranch_scc0 L_wf{n}_ok")
            poll()
            a("s_add_u32 s66, s66, 1")
            a(f"s_cmp_lt_u32 s66, {SPIN}")
            a(f"s_cbranch_scc1 L_wf{n}")
            a.label(f"L_wf{n}_ok")
        def load_p(tau):
            wait_flag(tau)
            a(f"s_mov_b32 s65, {tau*8192}")
            for ct in range(2):
                a(f"buffer_load_dwordx4 {vr(PD+8*tau+4*ct)}, v102, s[{SW}:{SW+3}], s65 offen offset:{ct*2048} sc1")
            if tau in (0, 5): self.stamp(7 if tau == 0 else 8)
        added = [False]
        def add_p(tau):
            self.wv([f"v{PD+8*tau+4}"])
            if tau == 5: self.stamp(9)
            for rt in range(2):
                for ct in range(2):
                    for i in range(2):
                        for h in range(2):
                            d = SUM + (ct*2+rt)*4 + 2*i + h
                            a(f"v_dot2_f32_bf16 v{d}, v{PD+8*tau+4*ct+2*rt+i}, s{62+h}, {f'v{d}' if added[0] else '0'}")
            added[0] = True
        def own():
            self.bar()
            d = OW if added[0] else SUM
            for ct in range(2):
                for rt in range(2):
                    a(f"ds_read_b128 {vr(d+(ct*2+rt)*4)}, v108 offset:{ct*4096 + rt*1024}")
            a("s_waitcnt lgkmcnt(0)")
            if added[0]:
                for i in range(16): a(f"v_add_f32 v{SUM+i}, v{SUM+i}, v{OW+i}")
            added[0] = True
        def load_g(k=None):
            if k is not None: a(f"s_mul_i32 s56, s64, {hex(0x111111 & ((1 << (4*k+4)) - 1))}")
            a.label("L_gw")
            for i in range(3): a(f"s_load_dword s{52+i}, s[48:49], s{40+i} glc")
            a("s_add_u32 s66, s66, 1")
            a("s_waitcnt lgkmcnt(0)")
            a("s_or_b32 s55, s55, s52")
            a(f"s_cmp_ge_u32 s66, {SPIN}")
            a("s_cbranch_scc1 L_gg")
            a("s_lshr_b32 s65, s52, 19")
            a("s_and_b32 s65, s65, s53"); a("s_and_b32 s65, s65, s54")
            a("s_bitcmp1_b32 s65, 5")
            if "nog" not in self.abl: a("s_cbranch_scc0 L_gw")
            if k is not None:
                a.label("L_gw2")
                a("s_andn2_b32 s65, s56, s55")
                a("s_cbranch_scc0 L_gg")
                poll()
                a("s_add_u32 s66, s66, 1")
                a("s_waitcnt lgkmcnt(0)")
                a("s_or_b32 s55, s55, s52")
                a(f"s_cmp_lt_u32 s66, {SPIN}")
                a("s_cbranch_scc1 L_gw2")
            a.label("L_gg")
            for i in range(4):
                a(f"buffer_load_dwordx4 {vr(GD+4*i)}, v103, s[{SW}:{SW+3}], s{sGA} offen offset:{1024*i} sc1")
            for i in range(4):
                a(f"buffer_load_ushort v{GP+i}, v105, s[{SW}:{SW+3}], s{sGB} offen offset:{(32 if self.opt['c0'] else 1024)*i} sc1")
            a(f"buffer_load_dwordx2 v[124:125], v123, s[{SW}:{SW+3}], s43 offen sc1")
            self.stamp(4)
        def proc_g():
            self.wv(["v124"])
            self.stamp(5)
            for i in range(4):
                a(f"v_bfi_b32 v{GD+4*i}, v104, v{GP+i}, v{GD+4*i}")
                a(f"ds_write_b128 v106, {vr(GD+4*i)} offset:{1024*i}")
            for part in range(2):
                for ct in range(2):
                    for h in range(2):
                        a(f"ds_read_b64_tr_b16 {vr(GF+(ct*2+part)*4+2*h, 2)}, v107 offset:{h*512 + part*64 + ct*32}")
            self.run([mfma(Y+(ct*2+rt)*4, GF+(ct*2+part)*4, TW+8*part+4*rt, "0" if part == 0 else None)
                      for part in range(2) for ct in range(2) for rt in range(2)], {})
            for i in range(4): a(f"v_mul_f32 v{112+i}, {f32(-1.4426950408889634)}, v{124+i//2}")
            a("v_mov_b32 v116, 1.0"); a("v_mov_b32 v117, 1.0")
            a(f"s_cmp_eq_u32 s{sMir}, 0")
            a("s_cbranch_scc1 L_nomir")
            a("s_nop 4")
            for ct in range(2):
                for rt in range(2):
                    a(f"ds_bpermute_b32 v{Y2+(ct*2+rt)*4}, v122, v{Y+(ct*2+rt)*4}")
                    for e in range(1, 4):
                        a(f"ds_bpermute_b32 v{Y2+(ct*2+rt)*4+e}, v121, v{Y+((1-ct)*2+rt)*4+4-e}")
            a("s_mov_b64 vcc, 0xffff")
            a("s_waitcnt lgkmcnt(0)")
            for ct in range(2):
                for rt in range(2):
                    a(f"v_cndmask_b32 v{Y+(ct*2+rt)*4}, v{Y2+((1-ct)*2+rt)*4}, v{Y2+(ct*2+rt)*4}, vcc")
                    for e in range(1, 4):
                        a(f"v_mov_b32 v{Y+(ct*2+rt)*4+e}, v{Y2+(ct*2+rt)*4+e}")
            a.label("L_nomir")
            a("s_nop 4")
            for ct in range(2):
                for rt in range(2):
                    for e in range(4):
                        i = Y + (ct*2+rt)*4 + e
                        a(f"v_mul_f32 v{i}, v{i}, v{124+rt}")
            self.stamp(6)
        a("s_mov_b32 s55, 0"); a("s_mov_b32 s52, 0")
        for it in SCRIPTS[o["gs"]].split():
            if it == "F": own()
            elif it == "P": poll()
            elif it == "LG": load_g()
            elif it == "PG": proc_g()
            else: {"W": wait_flag, "L": load_p, "A": add_p, "G": load_g}[it[0]](int(it[1]))
        T = 52
        a(f"s_mov_b32 s65, {16*64*896}")
        for rt in range(2):
            idx = [(ct*2+rt)*4 + e for ct in range(2) for e in range(4)]
            for i in idx[::2]: a(f"v_pk_mul_f32 {vr(T+i,2)}, {vr(SUM+i,2)}, {vr(112+2*rt,2)}")
            for i in idx: a(f"v_exp_f32 v{T+i}, v{T+i}")
            for i in idx[::2]: a(f"v_pk_mul_f32 {vr(Y+i,2)}, {vr(Y+i,2)}, {vr(SUM+i,2)}")
            for i in idx[::2]: a(f"v_pk_add_f32 {vr(T+i,2)}, {vr(T+i,2)}, v[116:117]")
            for i in idx: a(f"v_rcp_f32 v{T+i}, v{T+i}")
            if rt == 1:
                self.wl([f"v{GD}"])
                a(f"buffer_store_dwordx4 {vr(GD)}, v120, s[{SO}:{SO+3}], 0 offen {['', 'sc1', 'nt', 'sc0 sc1'][o['of']]}")
            for i in idx[::2]: a(f"v_pk_fma_f32 {vr(Y+i,2)}, {vr(Y+i,2)}, {vr(T+i,2)}, {vr(XU+i,2)}")
            for ct in range(2):
                n = ct*2 + rt
                for i in range(2): a(f"v_cvt_pk_bf16_f32 v{XR+2*n+i}, v{Y+4*n+2*i}, v{Y+4*n+2*i+1}")
                a(f"ds_write_b64 v{109+ct}, {vr(XR+2*n, 2)} offset:{rt*2048}")
            a(f"ds_read_b128 {vr(GD+4*rt)}, v111 offset:{rt*2048}")
        a("s_waitcnt lgkmcnt(0)")
        a(f"buffer_store_dwordx4 {vr(GD+4)}, v120, s[{SO}:{SO+3}], s65 offen {['', 'sc1', 'nt', 'sc0 sc1'][o['of']]}")
        self.stamp(10)
        self.stamp_out(11)
        a("s_endpgm")

    def dft_head(self):
        a = self.a
        a.label("L_dft")
        self.tr.reset()
        a("v_lshrrev_b32 v5, 3, v0")
        a(f"v_lshl_add_u32 v7, v5, 5, s{sR}")
        a("v_mul_u32_u24 v7, 896, v7")
        a("v_lshl_add_u32 v7, v6, 4, v7")
        a("v_lshrrev_b32 v8, 2, v6")
        a("v_lshl_or_b32 v8, v8, 30, v7")
        a("s_waitcnt lgkmcnt(0)")
        a(f"s_mov_b32 s{SX}, s4")
        a(f"s_and_b32 s{SX+1}, s5, 0xffff")
        for k in range(4):
            for h in range(2):
                a(f"buffer_load_dwordx4 {vr(16+8*k+4*h)}, v{8 if k == 3 else 7}, s[{SX}:{SX+3}], 0 offen offset:{128*k + 448*h}")
        a("s_branch L_dft2")
        self.dft_after_x = [set(e) for e in self.tr.vm]

    def dft(self):
        a = self.a; sp = self.spread
        DXR, DU = 16, 48
        AF, BF, AC, Z, TW = [16, 32], 128, 48, 128, 112
        XA, TA, RS = 248, 250, 254
        sBase = 50
        MS, GO = self.opt["ms"], self.opt["go"]
        a.label("L_dft2")
        self.tr.lds, self.tr.vm = [], self.dft_after_x
        self.ws_srd(a)
        srd(a, SD, 46, 256)
        a("v_mov_b32 v12, 0xffff0000")
        a("v_mov_b32 v244, 0"); a("v_mov_b32 v245, 0"); a("v_mov_b32 v15, 0")
        a("v_bfe_u32 v3, v5, 1, 4"); a("v_and_b32 v4, 1, v5"); a("v_lshl_add_u32 v3, v3, 1, v4")
        a("v_lshrrev_b32 v4, 5, v5"); a("v_lshl_add_u32 v3, v3, 1, v4"); a("v_lshlrev_b32 v3, 2, v3")
        a(f"v_add_u32 v{RS}, {RSL}, v3")
        self.ximg_waddr()
        a("s_mov_b32 s54, 0x0f0f0f0f"); a("s_mov_b32 s55, 0x0f0f0f0f")
        a(f"s_cmp_eq_u32 s{sWV}, 7")
        a("s_cbranch_scc1 L_dft_w7")
        saved7 = [set(e) for e in self.tr.vm]
        a("s_add_u32 s6, s6, L_tab-L_pc"); a("s_addc_u32 s7, s7, 0")
        a(f"s_mul_i32 s52, s{sWV}, 28672"); a("s_add_u32 s52, s52, 8192")
        a(f"v_lshl_add_u32 v{TA}, v2, 4, s52")
        for i in range(1, 4): a(f"v_add_u32 v{TA+i}, {8192*i}, v{TA}")
        a(f"s_lshl_b32 s{sBase}, s{sWV}, 13"); a(f"s_add_u32 s{sBase}, s{sBase}, {DW}")
        self.ximg_raddr(XA, XA+1, DX)
        bl = [f"global_load_dwordx4 {vr(BF+4*n)}, v{TA+n//8}, s[6:7] offset:{1024*(n%8) - 4096}" for n in range(28)]
        def ln(loads):
            for k in range(4):
                self.wv([f"v{DXR+8*k+4}"])
                for i in range(4):
                    x1 = DXR + 8*k + i; x2 = x1 + 4; u = DU + 16*k + 4*i
                    a(f"v_dot2_f32_bf16 v15, v{x1}, v{x1}, v15")
                    a(f"v_lshlrev_b32 v240, 16, v{x1}")
                    a(f"v_and_b32 v241, v12, v{x1}")
                    a(f"v_dot2_f32_bf16 v15, v{x2}, v{x2}, v15")
                    a(f"v_lshlrev_b32 v242, 16, v{x2}")
                    a(f"v_and_b32 v243, v12, v{x2}")
                    a(f"v_pk_add_f32 {vr(u,2)}, v[240:241], v[242:243]")
                    a(f"v_sub_f32 v{u+2}, v240, v242"); a(f"v_sub_f32 v{u+3}, v241, v243")
                    a(f"v_pk_add_f32 v[244:245], v[244:245], {vr(u,2)}")
                    if loads and i % 2 == 1 and k >= self.opt["dk"]: a(loads.pop(0))
            self.stamp(1)
            a("v_add_f32 v14, v244, v245")
            a("s_nop 1")
            for x in self.ln_stats([(13, 14, 15)]): a(x)
            a("v_add_f32 v13, v13, v13")
            a("v_mov_b32 v15, v14")
            a("v_mul_f32 v240, v13, v14"); a("v_mul_f32 v241, v13, v14")
            a(f"ds_write_b32 v{RS}, v14")
            for par in range(2):
                for k in range(4):
                    for i in range(4):
                        u = DU + 16*k + 4*i + 2*par
                        if par == 0: a(f"v_pk_fma_f32 {vr(u,2)}, {vr(u,2)}, v[14:15], v[240:241]")
                        else: a(f"v_pk_mul_f32 {vr(u,2)}, {vr(u,2)}, v[14:15]")
                        a(f"v_cvt_pk_bf16_f32 v{DXR+8*k+4*par+i}, v{u}, v{u+1}")
                    if k == 3: a("s_mov_b64 exec, s[54:55]")
                    a(f"ds_write_b128 v9, {vr(DXR+8*k+4*par)} offset:{k*8192 + par*28672}")
                    if k == 3: a("s_mov_b64 exec, -1")
                    if loads: a(loads.pop(0))
            a("s_waitcnt lgkmcnt(0)")
            self.bar()
        ln(bl)
        self.stamp(2)
        if self.opt["prio"]:
            a(f"s_cmp_ge_u32 s{sWV}, 4"); a("s_cbranch_scc1 L_dft_lo"); a("s_setprio 2"); a.label("L_dft_lo")
        def rds(n):
            par, k = n // 7, n % 7
            return [f"ds_read_b128 {vr(AF[n%2]+4*t)}, v{XA+(k%2)} offset:{par*28672 + (k//2)*8192 + t*1024}" for t in range(4)]
        def mms(n):
            par, k = n // 7, n % 7
            return [mfma(AC + 32*par + 16*im + 4*t, AF[n%2]+4*t, BF+8*n+4*im, "0" if k == 0 else None) for im in range(2) for t in range(4)]
        def zepi(tile):
            s = AC + 16*tile; o = Z + 8*tile; l = []
            for t in range(2):
                for e in range(0, 4, 2):
                    x = s + 4*t + e; y = x + 8
                    l.append(f"v_add_f32 v3, v{x}, v{y}\nv_add_f32 v4, v{x+1}, v{y+1}")
                    l.append(f"v_sub_f32 v10, v{x}, v{y}\nv_sub_f32 v13, v{x+1}, v{y+1}")
                    l.append(f"v_cvt_pk_bf16_f32 v{o+2*t+e//2}, v3, v4")
                    l.append(f"v_cvt_pk_bf16_f32 v{o+4+2*t+e//2}, v10, v13")
            return l
        addr = Asm()
        addr("v_and_b32 v5, 7, v2"); addr("v_xor_b32 v5, v5, v11"); addr("v_lshlrev_b32 v5, 4, v5")
        addr("v_lshl_add_u32 v5, v8, 7, v5"); addr("v_xor_b32 v6, 64, v5")
        addr(f"v_add_u32 v9, s{sBase}, v5"); addr(f"v_add_u32 v7, s{sBase}, v6")
        addr("v_lshrrev_b32 v5, 3, v2"); addr("v_and_b32 v6, 7, v2"); addr("v_xor_b32 v14, v5, v6")
        addr("v_lshlrev_b32 v14, 4, v14"); addr("v_lshl_add_u32 v14, v5, 7, v14"); addr(f"v_add_u32 v14, s{sBase}, v14")
        addr("v_mul_u32_u24 v15, 57344, v5"); addr("v_lshl_add_u32 v15, v6, 4, v15")
        addr(f"s_lshl_b32 s56, s{sWV}, 12"); addr(f"s_lshl_b32 s57, s{sR}, 7"); addr("s_add_u32 s56, s56, s57")
        addr(f"s_add_u32 s56, s56, {GBASE}")
        addr("v_add_u32 v15, s56, v15")
        addr("v_lshlrev_b32 v242, 4, v6"); addr("v_lshl_add_u32 v242, v2, 7, v242"); addr(f"v_add_u32 v242, s{sBase}, v242")
        addr("v_xor_b32 v243, 64, v242")
        addr("v_and_b32 v5, 31, v2"); addr("v_lshrrev_b32 v6, 5, v2"); addr("v_lshl_add_u32 v5, v5, 1, v6")
        addr(f"s_lshl_b32 s56, s{sWV}, 7"); addr(f"s_lshl2_add_u32 s56, s{sR}, s56"); addr(f"s_add_u32 s58, s56, {C0BASE}")
        addr("v_mul_u32_u24 v244, 896, v5")
        addr("v_lshlrev_b32 v5, 2, v2")
        addr("v_mov_b32 v240, 0x80008000"); addr("v_mov_b32 v241, 0x80000000")
        for x in rds(0): a(x)
        a("v_lshlrev_b32 v246, 4, v2")
        bl += [f"global_load_dwordx4 {vr(TW+4*i)}, v246, s[6:7] offset:{1024*i}" for i in range(4)]
        for _ in range(2): a(bl.pop(0))
        ms = []; f = {}
        for n in range(14):
            ms += mms(n)
            if n < 13:
                sp(f, rds(n+1), 8*n)
                f.setdefault(8*n+7, []).append(lambda n=n: self.wv([f"v{BF+8*n+12}"]))
            for g in (4, 5, 6):
                if bl: f.setdefault(8*n+g, []).append(bl.pop(0))
        assert not bl
        sp(f, addr.lines, 20)
        sp(f, zepi(0) + zepi(1), 62)
        f.setdefault(100, []).append(f"buffer_load_dword v6, v5, s[{SD}:{SD+3}], 0 offen sc1")
        self.wv([f"v{BF+4}"])
        self.run(ms, f, look=4)
        self.stamp(3)
        NB, TX, GA, GP, GR = 16, 32, 160, 48, 80
        self.wv([f"v{TW+12}"])
        for i in range(16):
            a(f"v_xor_b32 v{TX+i}, v241, v{TW+i}")
        for x in zepi(2) + zepi(3): a(x)
        for eo in range(2):
            for i in range(8):
                a(f"v_xor_b32 v{NB+8*eo+i}, v240, v{Z+16*eo+8+i}")
        def s1(T):
            par = T >> 1; tw = (TX if T & 1 else TW) + 8*par; g = GA + 16*T; l1 = []; l2 = []
            for eo in range(2):
                za = Z + 16*eo + 4*par; zb = za + 8; nb = NB + 8*eo + 4*par
                l1.append(mfma(g + 4*eo, za, tw, "0")); l2.append(mfma(g + 4*eo, nb, tw+4))
                l1.append(mfma(g + 8 + 4*eo, zb, tw, "0")); l2.append(mfma(g + 8 + 4*eo, za, tw+4))
            return l1 + l2
        def s1epi(T):
            g = GA + 16*T; o = GP + 8*T; l = []
            for part in range(2):
                for e in range(4):
                    l.append(f"v_cvt_pk_bf16_f32 v{o+4*part+e}, v{g+8*part+e}, v{g+8*part+4+e}")
                l.append(f"ds_write_b128 v{7 if part else 9}, {vr(o+4*part)} offset:{T*2048}")
            for n in (2*T, 2*T+1):
                l.append(f"ds_read_b128 {vr(GR+4*n)}, v14 offset:{n*1024}")
            return l
        def gstore(n):
            def g():
                T = n >> 1
                a(f"s_mov_b32 s56, {(16*(n&1) + 32*(T&1) + (T>>1))*28672}")
                self.wl([f"v{GR+4*n}"])
                a(f"buffer_store_dwordx4 {vr(GR+4*n)}, v15, s[{SW}:{SW+3}], s56 offen sc1")
            return g
        f = sp({}, s1epi(0), 15, 2); sp(f, s1epi(1), 22, 2); sp(f, [gstore(0), gstore(1)], 30)
        self.run(s1(0) + s1(1) + s1(2) + s1(3), f)
        c0 = ["ds_read_u16 v10, v242", "ds_read_u16 v13, v243"]
        for x in s1epi(2) + [gstore(2), gstore(3)] + s1epi(3) + c0 + [gstore(n) for n in range(4, 8)]: self.emit(x)
        a("s_waitcnt lgkmcnt(0)")
        a("v_lshl_or_b32 v10, v13, 16, v10")
        if self.opt["c0"]: a(f"buffer_store_dword v10, v244, s[{SW}:{SW+3}], s58 offen sc1")
        self.stamp(4)
        a(f"s_mul_i32 s56, s{sWV}, {MS}"); a(f"s_add_u32 s56, s56, {MBOX + GO}")
        a(f"v_mul_u32_u24 v3, {7*MS}, v2"); a("v_add_u32 v3, s56, v3")
        a("v_mov_b32 v4, 1")
        a("s_mov_b32 s54, 0")
        a.label("L_drdy")
        a("s_waitcnt vmcnt(0)")
        a("v_cmp_le_u32 vcc, 7, v6")
        a("s_add_u32 s54, s54, 1")
        a(f"s_cmp_ge_u32 s54, {SPIN}")
        a("s_cbranch_scc1 L_dgo")
        a("s_cmp_eq_u32 vcc_lo, -1")
        a("s_cbranch_scc1 L_dgo")
        a(f"buffer_load_dword v6, v5, s[{SD}:{SD+3}], 0 offen sc1")
        a("s_branch L_drdy")
        a.label("L_dgo")
        self.tr.reset()
        a("s_mov_b32 exec_hi, 0")
        a(f"buffer_atomic_add v4, v3, s[{SW}:{SW+3}], 0 offen sc1")
        a("s_mov_b64 exec, -1")
        self.stamp(5)
        a("s_branch L_dft_end")
        a.label("L_dft_w7")
        self.tr.lds, self.tr.vm = [], saved7
        ln([])
        a("v_lshlrev_b32 v5, 2, v2")
        a(f"v_add_u32 v3, {RSL}, v5")
        a("ds_read_b32 v4, v3")
        a(f"s_lshl_b32 s56, s{sR}, 8"); a(f"s_add_u32 s56, s56, {STATS}")
        a(f"s_lshl_b32 s57, s{sR}, 2"); a(f"s_mul_i32 s58, s{sR}, {7*MS}"); a(f"s_add_u32 s58, s58, {MBOX}")
        a("s_waitcnt lgkmcnt(0)")
        a(f"buffer_store_dword v4, v5, s[{SW}:{SW+3}], s56 offen sc1")
        a(f"v_mul_u32_u24 v3, {MS}, v2"); a("v_mov_b32 v6, 0x1000000")
        a("s_mov_b32 s54, 0")
        a("s_waitcnt vmcnt(0)")
        a.label("L_w7rdy")
        a("s_load_dword s55, s[46:47], s57 glc")
        a("s_add_u32 s54, s54, 1")
        a("s_waitcnt lgkmcnt(0)")
        a(f"s_cmp_ge_u32 s54, {SPIN}")
        a("s_cbranch_scc1 L_w7go")
        a("s_cmp_ge_u32 s55, 7")
        a("s_cbranch_scc0 L_w7rdy")
        a.label("L_w7go")
        a("s_mov_b64 exec, 0x7f")
        a(f"buffer_atomic_or v6, v3, s[{SW}:{SW+3}], s58 offen sc1")
        a("s_mov_b64 exec, -1")
        a.label("L_dft_end")
        self.stamp_out(6)
        a.label("L_end")
        a("s_endpgm")

    def table(self):
        a = self.a
        def row(v): a.raw(".quad " + ",".join("0x%x" % (v[4*i] | v[4*i+1] << 16 | v[4*i+2] << 32 | v[4*i+3] << 48) for i in range(len(v)//4)))
        a.raw(".p2align 8")
        a.raw(".type L_tab,@object")
        a.label("L_tab")
        for par in range(2):
            for fn in (math.cos, math.sin):
                for lane in range(64):
                    t0 = 2*(lane & 15) + par; g = lane >> 4
                    row([bf16(fn(-2*math.pi*(((16*(q >> 2) + 4*g + (q & 3))*t0) % 64)/64)) for q in range(8)])
        tab = {fn: [bf16(round(fn(-2*math.pi*m/448), 15)) for m in range(448)] for fn in (math.cos, math.sin)}
        for w in range(7):
            for par in range(2):
                for k in range(7):
                    for fn in (math.cos, math.sin):
                        for l0 in range(0, 64, 8):
                            v = []
                            for lane in range(l0, l0 + 8):
                                e = 32*w + 2*(lane & 15) + par or 224
                                v += [tab[fn][(e*(32*k + 8*(lane >> 4) + q)) % 448] for q in range(8)]
                            row(v)
        a.raw(f".size L_tab, {4096 + 7*28672}")

    def build(self):
        a = self.a
        K = NAME + "_kernel"
        kernel_begin(a, K)
        self.prologue()
        self.helper(0)
        self.dft_head()
        a.raw(".p2align 3")
        a.label("L_compute")
        self.compute()
        self.helper(1)
        self.dft()
        self.table()
        hdr = open("cdna_kernels/" + NAME + ".s.ref").read().split("; Override launch")[0]
        return hdr + file_text([f"grid=(256,1,1) block=(512,1,1) lds={LDS_BYTES}"], a.text(), [descriptor(K, 256, 102, 256)])

if __name__ == "__main__":
    import argparse, subprocess
    ap = argparse.ArgumentParser()
    ap.add_argument("-o", default="k.s"); ap.add_argument("--mapping", default="4")
    ap.add_argument("--abl", default=""); ap.add_argument("--stamps", action="store_true"); ap.add_argument("--opt", default="")
    r = ap.parse_args()
    opt = {k: int(v) for k, v in (x.split("=") for x in r.opt.split(",") if x)}
    g = Gen(r.mapping, r.stamps, [x for x in r.abl.split(',') if x], opt)
    t = g.build()
    open(r.o, "w").write(t)
    rc = subprocess.run(["clang", "-x", "assembler", "-target", "amdgcn-amd-amdhsa", "-mcpu=gfx950", "-c", r.o, "-o", r.o + ".o"], capture_output=True, text=True)
    for e in g.tr.errors[:20]: print("WAIT:", e)
    print(r.o, "hazards:", hazcheck.check(t), "waits:", len(g.tr.errors), "asm:", "ok" if rc.returncode == 0 else rc.stderr[:2000])
```

```python
import sys, struct, math
from asmlib import *
import hazcheck

MBOX = 0xc00000
PBASE = 0x100000
GBASE = 0x1000000
C0BASE = 0x40000
STATS = 0x80000
STAMP = 0x1400000
WS_BYTES = 0x1800000
OOB = 0x7ff00000
XIMG = 98304
HIMG = 0
GST = XIMG
OWN = XIMG + 16384
OUTT = XIMG + 32768
LDS_BYTES = 163840
DX = 0
DW = 57344
SX, SA, SB, SW, SO, SD = 8, 12, 16, 20, 24, 28
sR, sJ, sC, sWV, sK = 32, 33, 34, 35, 3
SPIN = 20000
RSL = LDS_BYTES - 256

def slot(pair):
    return 32768 * (pair % 3 if pair < 9 else {9: 3, 10: 4, 11: 1, 12: 0, 13: 2}[pair])

def f32(x):
    return "0x%08x" % struct.unpack("<I", struct.pack("<f", x))[0]

def bf16(x):
    u = struct.unpack("<I", struct.pack("<f", x))[0]
    return ((u + 0x7fff + ((u >> 16) & 1)) >> 16) & 0xffff

def vr(b, n=4):
    return f"v[{b}:{b+n-1}]"

def mfma(d, a, b, c=None):
    cc = vr(d) if c is None else c
    return f"v_mfma_f32_16x16x32_bf16 {vr(d)}, {vr(a)}, {vr(b)}, {cc}"

SCRIPTS = [
    "W3 L0 L1 P A0 L2 P A1 L3 P A2 LG A3 L4 L5 PG F A4 A5",
    "LG PG W3 L0 L1 P A0 L2 P A1 L3 P A2 L4 P A3 L5 F A4 A5",
    "W4 L0 L1 P A0 L2 P A1 L3 P A2 LG A3 L4 L5 PG F A4 A5",
    "W2 L0 L1 P A0 L2 P A1 L3 P A2 LG A3 L4 L5 PG F A4 A5",
    "W3 L0 L1 L2 P A0 L3 P A1 LG A2 L4 A3 L5 PG F A4 A5",
    "LG PG W4 L0 L1 L2 P A0 L3 A1 L4 A2 L5 F A3 A4 A5",
    "LG PG W5 L0 L1 L2 L3 L4 L5 F A0 A1 A2 A3 A4 A5",
    "LG PG L0 L1 P A0 L2 P A1 L3 P A2 L4 P A3 L5 F A4 A5",
    "G5 L0 L1 L2 L3 L4 L5 PG F A0 A1 A2 A3 A4 A5",
    "G4 P L0 L1 L2 L3 L4 L5 PG F A0 A1 A2 A3 A4 A5",
    "G3 P L0 L1 L2 L3 L4 L5 PG F A0 A1 A2 A3 A4 A5",
    "G3 W4 L0 L1 L2 L3 L4 L5 PG F A0 A1 A2 A3 A4 A5",
    "G3 W5 L0 L1 L2 L3 L4 L5 PG F A0 A1 A2 A3 A4 A5",
    "G2 PG W5 L0 L1 L2 L3 L4 L5 F A0 A1 A2 A3 A4 A5",
]

FL = ['sc1', 'sc0 sc1', 'nt', 'sc1 nt', 'sc0 sc1 nt', '']

class Gen:
    def __init__(self, mapping="4", stamps=False, abl=(), opt=None):
        self.tr = hazcheck.Tracker()
        self.a = Asm(self.tr); self.mapping = mapping; self.stamps = stamps; self.abl = set(abl)
        self.opt = dict(prio=1, e9=2, wx=40, wd=35, nw=1, nh=2, n8=2, n9=3, lastb=12, gs=6, dk=0, xb=44, of=0, c0=0, wo=0, lf=0, gf=0, sf=0, nk=2, sfirst=10, refl=1, ms=4352, go=0x100080, slp=0, lag=80, w0=110, wp=30, kj=0, xf=0, wf=0, xa=0)
        self.opt.update(opt or {})

    def tag(self, name):
        self.tr.vm[-1].add(name)
    def wl(self, regs):
        n = self.tr.need(self.tr.lds, set(regs))
        if n is not None: self.a(f"s_waitcnt lgkmcnt({min(n, 15)})")
    def wv(self, regs, lgkm0=False):
        n = self.tr.need(self.tr.vm, set(regs))
        if n is not None and lgkm0: self.a(f"s_waitcnt vmcnt({n}) lgkmcnt(0)")
        elif n is not None: self.a(f"s_waitcnt vmcnt({n})")
        elif lgkm0: self.a("s_waitcnt lgkmcnt(0)")
    def emit(self, item):
        if callable(item): item()
        else: self.a(item)
    def run(self, ms, fills, look=4):
        R = lambda m: hazcheck.Ins(m, 0).r
        for g, m in enumerate(ms):
            if self.tr.need(self.tr.lds, R(m)) is not None:
                regs = set()
                for m2 in ms[g:g+look]: regs |= R(m2)
                self.wl(regs)
            self.a(m)
            for f in fills.get(g, []): self.emit(f)
    @staticmethod
    def spread(fills, items, g0, per=1):
        g = g0; n = 0
        for it in items:
            fills.setdefault(g, []).append(it); n += 1
            if n == per: n = 0; g += 1
        return fills

    def stamp(self, i):
        if self.stamps:
            self.a(f"{'s_memrealtime' if 'rt' in self.abl else 's_memtime'} s[{72+2*i}:{73+2*i}]")

    def bar(self):
        a = self.a
        if "trace" in self.abl:
            a("s_waitcnt lgkmcnt(0)")
            a("s_mov_b32 m0, s100"); a("s_add_u32 s100, s100, 2")
            a("v_writelane_b32 v1, s96, m0"); a("s_add_u32 m0, m0, 1"); a("s_nop 0")
            a("v_writelane_b32 v1, s98, m0")
            a("s_memtime s[96:97]")
            a("s_barrier")
            a("s_memtime s[98:99]")
        else:
            a("s_barrier")

    def stamp_out(self, n):
        if not self.stamps: return
        a = self.a
        a("s_memrealtime s[68:69]")
        a("s_getreg_b32 s67, hwreg(HW_REG_XCC_ID)")
        a("s_waitcnt vmcnt(0) lgkmcnt(0)")
        a("s_lshl_b32 s66, s33, 8"); a("s_or_b32 s67, s67, s66")
        a("s_lshl_b32 s66, s32, 16"); a("s_or_b32 s67, s67, s66")
        a("s_lshl_b32 s66, s34, 24"); a("s_or_b32 s67, s67, s66")
        a("v_mov_b32 v16, s70"); a("v_mov_b32 v17, s68"); a("v_mov_b32 v18, s67")
        for i in range(1, 14):
            if i < n:
                a(f"s_sub_u32 s66, s{72+2*i}, s72"); a(f"v_mov_b32 v{18+i}, s66")
            else:
                a(f"v_mov_b32 v{18+i}, 0")
        a("s_lshl_b32 s66, s2, 3"); a(f"s_add_u32 s66, s66, s{sWV}"); a("s_lshl_b32 s66, s66, 6")
        a(f"s_add_u32 s66, s66, {STAMP}")
        a("s_mov_b64 exec, 1")
        for i in range(4):
            a(f"buffer_store_dwordx4 {vr(16+4*i)}, off, s[{SW}:{SW+3}], s66 offset:{16*i}")
        a("s_mov_b64 exec, -1")
        if "trace" in self.abl:
            a("s_mov_b32 m0, s100"); a("s_add_u32 s100, s100, 2")
            a("v_writelane_b32 v1, s96, m0"); a("s_add_u32 m0, m0, 1"); a("s_nop 0")
            a("v_writelane_b32 v1, s98, m0")
            a("v_subrev_u32 v1, s72, v1")
            a("s_lshl_b32 s66, s2, 3"); a(f"s_add_u32 s66, s66, s{sWV}"); a("s_lshl_b32 s66, s66, 8")
            a(f"s_add_u32 s66, s66, {STAMP + 0x40000}")
            a("v_lshlrev_b32 v3, 2, v2")
            a(f"buffer_store_dword v1, v3, s[{SW}:{SW+3}], s66 offen")

    def prologue(self):
        a = self.a
        if self.stamps:
            a("s_memrealtime s[70:71]")
        self.stamp(0)
        if "trace" in self.abl: a("s_mov_b32 s100, 0")
        a("s_load_dwordx2 s[4:5], s[0:1], 0")
        a("s_load_dwordx8 s[40:47], s[0:1], 48")
        a("s_load_dwordx2 s[48:49], s[0:1], 80")
        a("s_cmp_ge_u32 s2, 256")
        a("s_cbranch_scc1 L_end")
        a("s_getpc_b64 s[6:7]")
        a.label("L_pc")
        a("s_bfe_u32 s50, s2, 0x30003")
        a("s_lshl_b32 s50, s50, 12")
        a("v_lshrrev_b32 v1, 6, v0")
        a("v_and_b32 v2, 63, v0")
        a("v_lshl_add_u32 v3, v1, 2, v2")
        a("v_lshl_add_u32 v3, v3, 7, s50")
        a(f"v_readfirstlane_b32 s{sWV}, v1")
        a("s_mov_b64 exec, 15")
        a("global_load_dword v1, v3, s[6:7]")
        a("s_mov_b64 exec, -1")
        if self.mapping.startswith("b"):
            lb = {"b4": 2, "b2": 1}[self.mapping]
            a("s_lshr_b32 s50, s2, 3")
            a(f"s_and_b32 s51, s2, {(1 << lb) - 1}")
            a("s_mul_i32 s52, s51, 28"); a("s_add_u32 s52, s52, s50")
            a(f"s_lshr_b32 s{sJ}, s52, {2+lb}")
            a(f"s_and_b32 s52, s52, {(4 << lb) - 1}")
            a("s_lshl2_add_u32 s51, s51, s50"); a("s_sub_u32 s51, s51, 28")
            a("s_cmp_ge_u32 s50, 28")
            a(f"s_cselect_b32 s{sJ}, 7, s{sJ}")
            a("s_cselect_b32 s50, s51, s52")
            a(f"s_bfe_u32 s51, s2, {hex(((3 - lb) << 16) | lb)}")
            a(f"s_lshl_b32 s{sR}, s50, {3-lb}"); a(f"s_or_b32 s{sR}, s{sR}, s51")
        else:
            m = int(self.mapping); lb = {8: 3, 4: 2, 2: 1, 1: 0}[m]
            a(f"s_and_b32 s{sJ}, s2, {m-1}")
            a(f"s_lshr_b32 s50, s2, {5+lb}")
            a(f"s_lshl_b32 s50, s50, {lb}")
            a(f"s_or_b32 s{sJ}, s{sJ}, s50")
            a(f"s_bfe_u32 s{sR}, s2, {hex((5 << 16) | lb)}")
            a(f"s_lshr_b32 s50, s{sR}, {3-lb}")
        nk = self.opt["nk"]
        if self.opt["kj"]: nk = 0; a(f"s_min_u32 s{sK}, s{sJ}, 6")
        if nk == 1: a(f"s_mov_b32 s{sK}, 0")
        elif nk == 2: a("s_and_b32 s51, s50, 1"); a(f"s_mul_i32 s{sK}, s51, 3")
        elif nk == 4: a("s_and_b32 s51, s50, 3"); a(f"s_lshl_b32 s{sK}, s51, 1")
        if self.opt["refl"]:
            a(f"s_sub_u32 s50, 32, s{sR}"); a(f"s_min_u32 s50, s50, s{sR}"); a("s_lshr_b32 s50, s50, 1")
        a(f"s_add_u32 s50, s50, s{sJ}")
        a("s_mul_i32 s51, s50, 37")
        a("s_lshr_b32 s51, s51, 8")
        a("s_mul_i32 s51, s51, 7")
        a(f"s_sub_u32 s{sC}, s50, s51")
        if self.opt["refl"]:
            a(f"s_sub_u32 s51, 6, s{sC}"); a(f"s_cmp_gt_u32 s{sR}, 16"); a(f"s_cselect_b32 s{sC}, s51, s{sC}")
        if nk == 7: a(f"s_mov_b32 s{sK}, s{sC}")
        a("v_and_b32 v6, 7, v0")
        a(f"s_mov_b32 s{SX+2}, {2048*896}")
        a(f"s_mov_b32 s{SX+3}, 0x00020000")
        a(f"s_cmp_eq_u32 s{sJ}, 7")
        a("s_cbranch_scc1 L_dft")
        a(f"s_cmp_lt_u32 s{sWV}, 4")
        a("s_cbranch_scc1 L_compute")

    def ws_srd(self, a):
        if "pick" in self.abl:
            a.lines.append("    s_load_dword s101, s[48:49], 0\n    s_waitcnt lgkmcnt(0)\n    s_and_b32 s101, s101, 0x0e000000\n    s_add_u32 s48, s48, s101\n    s_addc_u32 s49, s49, 0")
        if self.opt["wo"]:
            a.lines.append(f"    s_add_u32 s48, s48, {self.opt['wo'] << 20}\n    s_addc_u32 s49, s49, 0")
        srd(a, SW, 48, WS_BYTES)

    def tile_order(self, a):
        a(f"s_lshl_b32 s52, s{sC}, 7")
        for k in range(1, 7):
            a.lines.append(f"    s_add_u32 s{52+k}, s{51+k}, 128\n    s_cmp_eq_u32 s{52+k}, 896\n    s_cselect_b32 s{52+k}, 0, s{52+k}")

    def ximg_waddr(self):
        a = self.a
        a("v_lshrrev_b32 v8, 2, v6")
        a("v_and_b32 v11, 3, v6")
        a("v_mad_u32_u24 v9, v8, 12, v11")
        a("v_and_b32 v13, 15, v5")
        a("v_xor_b32 v9, v9, v13")
        a("v_lshlrev_b32 v9, 4, v9")
        a("v_lshl_add_u32 v9, v11, 8, v9")
        a("v_lshl_add_u32 v9, v8, 12, v9")
        a("v_lshrrev_b32 v13, 4, v5")
        a("v_lshl_add_u32 v9, v13, 10, v9")

    def ximg_raddr(self, d0, d1, base):
        a = self.a
        a("v_and_b32 v8, 15, v2")
        a("v_lshrrev_b32 v11, 4, v2")
        a(f"v_xor_b32 v{d0}, v8, v11")
        a(f"v_lshlrev_b32 v{d0}, 4, v{d0}")
        a(f"v_lshl_add_u32 v{d0}, v11, 8, v{d0}")
        a(f"v_xor_b32 v{d1}, {12*16}, v{d0}")
        if base: a(f"v_add_u32 v{d0}, {base}, v{d0}")
        a(f"v_add_u32 v{d1}, {base+4096}, v{d1}")

    def ln_stats(self, sets):
        l = []
        for pat in ("quad_perm:[1,0,3,2]", "quad_perm:[2,3,0,1]", "row_half_mirror"):
            for m, s_, q in sets:
                l.append(f"v_add_f32_dpp v{s_}, v{s_}, v{s_} {pat} row_mask:0xf bank_mask:0xf")
                l.append(f"v_add_f32_dpp v{q}, v{q}, v{q} {pat} row_mask:0xf bank_mask:0xf")
            if len(sets) == 1: l.append("s_nop 0")
        for m, s_, q in sets:
            l += [f"v_mul_f32 v{m}, {f32(-1/448)}, v{s_}", f"v_mul_f32 v{q}, {f32(1/448)}, v{q}", f"v_fma_f32 v{q}, -v{m}, v{m}, v{q}",
                  f"v_max_f32 v{q}, 0, v{q}", f"v_add_f32 v{q}, {f32(1e-5)}, v{q}", f"v_rsq_f32 v{s_}, v{q}"]
        return l

    def compute(self):
        a = self.a; sp = self.spread
        WF = [16, 32]; XF = [48, 64]; ACC = 128; AC2 = [48, 64]; HT = 80
        WA, XA, W2, HA, PA, HW, W2X = 112, 120, 122, 124, 125, 126, 127
        CS, XS, SPA, SPI, CA, MB = 192, 200, 208, 212, 216, 224
        FA, FB = 13, 5
        sP, sF = 4, 50
        def HF(k, t): return (192 if k % 2 == 0 else 128) + ((k // 2)*4 + t)*4
        def PK(tau): return 80 + 8*(tau % 4)
        self.tr.reset()
        a("s_waitcnt lgkmcnt(0)")
        self.ws_srd(a)
        a(f"s_cmp_lg_u32 s{sWV}, 0")
        a("s_cbranch_scc1 L_noclean")
        MS, GO = self.opt["ms"], self.opt["go"]
        a(f"s_mul_i32 s64, s{sR}, 7"); a(f"s_add_u32 s64, s64, s{sC}"); a(f"s_mul_i32 s64, s64, {MS}"); a(f"s_add_u32 s64, s64, {MBOX}")
        a(f"v_mul_u32_u24 v3, {GO}, v2")
        a("v_mov_b32 v4, 0")
        a("s_mov_b64 exec, 3")
        a(f"buffer_store_dword v4, v3, s[{SW}:{SW+3}], s64 offen sc1")
        a("s_mov_b64 exec, -1")
        a.label("L_noclean")
        self.tile_order(a)
        a("v_mov_b32 v12, 0xffff0000")
        for i in range(20): a(f"v_mov_b32 v{CS+i}, 0")
        a(f"v_mov_b32 v{SPI}, 0x4444"); a(f"v_mov_b32 v{SPI+1}, 0x4444")
        a("s_mov_b32 exec_lo, 0x11111111"); a("s_mov_b32 exec_hi, 0x22222222")
        for i in range(4): a(f"v_mov_b32 v{SPA+i}, 0x3f803f80")
        a("s_mov_b32 exec_lo, 0xf0f0f0f0"); a("s_mov_b32 exec_hi, 0xf0f0f0f0")
        a(f"v_mov_b32 v{SPI}, 0xeeee")
        a("s_mov_b32 exec_lo, 0xff00ff00"); a("s_mov_b32 exec_hi, 0xff00ff00")
        a(f"v_mov_b32 v{SPI+1}, 0xeeee")
        a("s_mov_b64 exec, -1")
        a("v_lshrrev_b32 v3, 2, v2")
        a("v_lshlrev_b32 v3, 7, v3")
        a("v_and_b32 v4, 3, v2")
        a("v_lshl_add_u32 v3, v4, 3, v3")
        a("v_bfe_u32 v4, v2, 3, 2")
        a("v_lshl_add_u32 v3, v4, 5, v3")
        a(f"s_lshl_b32 s64, s{sWV}, 12")
        a(f"s_lshl_b32 s65, s{sWV}, 5")
        for u in range(4):
            a(f"v_xor_b32 v{WA+u}, {32*u}, v3")
            a(f"v_add_u32 v{WA+u}, s64, v{WA+u}")
            a(f"v_add_u32 v{WA+4+u}, 0x10000, v{WA+u}")
        a(f"v_xor_b32 v{W2}, s65, v3")
        a(f"v_add_u32 v{W2+1}, 0x10000, v{W2}")
        a(f"v_add_u32 v{W2X}, 0x20000, v{W2}")
        a("v_and_b32 v8, 15, v2")
        a("v_lshrrev_b32 v4, 4, v2")
        a(f"v_xor_b32 v{XA}, v4, v6")
        a(f"v_lshlrev_b32 v{XA}, 4, v{XA}")
        a(f"v_lshl_add_u32 v{XA}, v8, 7, v{XA}")
        a(f"v_add_u32 v{XA}, {XIMG}, v{XA}")
        a(f"v_xor_b32 v{XA+1}, 64, v{XA}")
        a(f"v_lshlrev_b32 v{HA}, 4, v2")
        a(f"s_lshl_b32 s64, s{sWV}, 13")
        a(f"v_add_u32 v{HW}, s64, v{HA}")
        a(f"s_mul_i32 s64, s{sR}, 344064"); a(f"s_lshl_b32 s65, s{sWV}, 11"); a("s_add_u32 s64, s64, s65")
        a(f"s_add_u32 s64, s64, {PBASE}")
        a(f"v_lshl_add_u32 v{PA}, v2, 4, s64")
        a(f"s_mul_i32 s64, s{sR}, {7*MS}"); a(f"s_add_u32 s64, s64, {MBOX}")
        for t in range(6):
            a(f"s_mul_i32 s{sP+t}, s{53+t}, 384"); a(f"s_add_u32 s{sP+t}, s{sP+t}, {8192*t}")
        for t in range(6):
            a(f"s_mul_i32 s{sF+t}, s{53+t}, {MS//128}"); a(f"s_add_u32 s{sF+t}, s{sF+t}, s64")
        a(f"v_lshlrev_b32 v{FA}, 25, v2")
        a(f"s_lshl_b32 s64, 1, s{sWV}")
        for t in range(6): a(f"v_lshlrev_b32_e64 v{FB+t}, {4*t}, s64")
        a("s_waitcnt vmcnt(0)")

        def ring(pair):
            p = pair % 3
            return (1, 0) if p == 2 else (0, p*32768)
        def wrd(pair, half, u):
            hi, off = ring(pair)
            return [f"ds_read_b64_tr_b16 {vr(WF[half]+4*u+2*h, 2)}, v{WA+4*hi+u} offset:{off + half*16384 + h*2048}" for h in range(2)]
        def xrd(pair, half, t):
            return f"ds_read_b128 {vr(XF[half]+4*t)}, v{XA+half} offset:{pair*8192 + t*2048}"
        def rd_even(p):
            x = [xrd(p, 0, t) for t in range(4)]
            return [x[0]] + wrd(p, 0, 0) + x[1:] + wrd(p, 0, 1) + wrd(p, 0, 2) + wrd(p, 0, 3)
        def rd_odd(p):
            return wrd(p, 1, 0) + wrd(p, 1, 1) + [xrd(p, 1, t) for t in range(4)] + wrd(p, 1, 2) + wrd(p, 1, 3)
        def m1(half, u, t, zero=False):
            return mfma(ACC + (u*4+t)*4, WF[half]+4*u, XF[half]+4*t, "0" if zero else None)
        def smf(half, v):
            return f"v_smfmac_f32_16x16x64_bf16 {vr(CS+4*v)}, {vr(SPA)}, {vr(WF[half]+8*v, 8)}, v{SPI}"
        def mu(half, u, zero=False):
            return [m1(half, u, t, zero) for t in range(4)]
        def smx(half, v):
            return f"v_smfmac_f32_16x16x64_bf16 {vr(XS+4*v)}, {vr(SPA)}, {vr(XF[half]+8*v, 8)}, v{SPI+1}"
        def mm1(half, zero=False):
            return (mu(half, 0, zero) + mu(half, 1, zero) + [smf(half, 0), smx(half, 0)]
                    + mu(half, 2, zero) + mu(half, 3, zero) + [smf(half, 1), smx(half, 1)])
        def csprep(v):
            l = []
            for i in range(2):
                c = CS + 4*v + i; o = CA + 2*(2*v+i)
                l += [f"v_mul_f32 v{c}, {f32(-1/448)}, v{c}", f"v_cvt_pk_bf16_f32 v{o}, v{c}, v{c}", f"v_and_b32 v3, v12, v{o}",
                      f"v_sub_f32 v3, v{c}, v3", f"v_cvt_pk_bf16_f32 v{o}, v{c}, v3", f"v_mov_b32 v{o+1}, v{o}"]
            return l
        def mprep():
            l = []
            for t in range(4):
                c = XS + 4*(t//2) + t%2; o = MB + 2*t
                l += [f"v_cvt_pk_bf16_f32 v{o}, v{c}, v{c}", f"v_and_b32 v3, v12, v{o}", f"v_sub_f32 v3, v{c}, v3", f"v_cvt_pk_bf16_f32 v{o+1}, v3, v3"]
            return l
        def r1(v):
            return [f"v_mfma_f32_16x16x16_bf16 {vr(ACC+(u*4+t)*4)}, {vr(CA+2*u, 2)}, {vr(MB+2*t, 2)}, {vr(ACC+(u*4+t)*4)}"
                    for t in range(4) for u in (2*v, 2*v+1)]
        def w2rd(pair, k):
            sl = slot(pair)
            reg, off = [W2, W2+1, W2X][sl >> 16], sl & 0xffff
            return [f"ds_read_b64_tr_b16 {vr(WF[k%2]+4*(k//2)+2*h, 2)}, v{reg} offset:{off + k*4096 + h*2048}" for h in range(2)]
        def m2(tau, k):
            return [mfma(AC2[tau % 2]+4*t, WF[k%2]+4*(k//2), HF(k, t), "0" if k == 0 else None) for t in range(4)]
        def mm2(tau, par):
            return [m for k in range(par, 8, 2) for m in m2(tau, k)]
        def hrd(k):
            return [f"ds_read_b128 {vr(HF(k, t))}, v{HA} offset:{k*4096 + t*1024}" for t in range(4)]
        def endpair():
            a("s_waitcnt lgkmcnt(0)"); self.bar()

        self.stamp(1)
        self.bar()
        self.stamp(2)
        for r in rd_even(0): a(r)
        self.bar()
        ro = rd_odd(0)
        for r in ro[:3]: a(r)
        self.run(mm1(0, True), sp({}, ro[3:], 0))
        endpair()
        def reads(p):
            f = sp({}, rd_even(p), 0); sp(f, rd_odd(p)[:4], 13); sp(f, rd_odd(p)[4:], 20)
            return f
        for p in range(1, 6):
            self.run(mm1(1) + mm1(0), reads(p), look=10)
            endpair()
        self.stamp(3)
        def epi(v, t):
            o = HT + 4*(v*4+t); l = []
            for i in range(2):
                s = ACC + ((2*v+i)*4+t)*4
                l.append(f"v_cvt_pk_bf16_f32 v{o+2*i}, v{s}, v{s+1}")
                l.append(f"v_cvt_pk_bf16_f32 v{o+2*i+1}, v{s+2}, v{s+3}")
            for i in range(4):
                l.append(f"v_pk_max_i16 v{o+i}, v{o+i}, 0")
            return l
        ms = (mm1(1) + mu(0, 0) + mu(0, 1) + [smf(0, 0), smx(0, 0), smx(0, 1), smf(1, 0), smx(1, 0), smx(1, 1)]
              + mu(1, 0) + mu(1, 1) + mu(0, 2) + mu(0, 3) + [smf(0, 1), smf(1, 1)]
              + r1(0) + mu(1, 2) + mu(1, 3) + r1(1))
        f = reads(6)
        f.setdefault(self.opt["xb"], []).append(endpair)
        sp(f, ["s_nop 2", "s_nop 2"], 35); sp(f, csprep(0) + mprep(), 37, 2)
        e0 = [x for t in range(4) for x in epi(0, t)]
        sp(f, [x for k in (0, 2, 4, 6, 1, 3) for x in w2rd(7, k)], 51); sp(f, w2rd(7, 5) + w2rd(7, 7), 68)
        sp(f, e0[:3], 57); sp(f, csprep(1)[:3], 60); sp(f, csprep(1)[3:], 63, 3); sp(f, e0[3:7], 66, 2); sp(f, e0[7:23], 68, 2)
        self.run(ms, f, look=3)
        for x in e0[23:] + [x for t in range(4) for x in epi(1, t)]: a(x)
        self.bar()
        self.stamp(4)
        for v in range(2):
            for t in range(4): a(f"ds_write_b128 v{HW}, {vr(HT + 4*(v*4+t))} offset:{v*4096 + t*1024}")
        endpair()
        hr = [x for k in (0, 2, 4, 6, 1, 3, 5, 7) for x in hrd(k)]
        for r in hr[:10]: a(r)
        f = sp({}, hr[10:], 0); sp(f, [x for k in (0, 2, 4, 6) for x in w2rd(8, k)], 22)
        f.setdefault(31, []).append(self.bar)
        self.run(mm2(0, 0) + mm2(0, 1), f)
        self.stamp(5)

        def store(tau, p):
            def g():
                a(f"buffer_store_dwordx4 {vr(PK(tau)+4*p)}, v{PA}, s[{SW}:{SW+3}], s{sP+tau} offen offset:{1024*p} {FL[self.opt['sf']]}")
                self.tag(f"S{tau}")
            return g
        def cvts(tau):
            s = AC2[tau % 2]
            return [f"v_cvt_pk_bf16_f32 v{PK(tau)+i}, v{s+2*i}, v{s+2*i+1}" for i in range(8)]
        def flag(tau):
            def g():
                self.wv([f"S{tau}"])
                a(f"buffer_atomic_or v{FB+tau}, v{FA}, s[{SW}:{SW+3}], s{sF+tau} offen sc1")
                if tau in (0, 5): self.stamp(7 if tau == 0 else 8)
            return g
        g0 = 32*(self.opt["sfirst"] - 9) + 16
        f = {}; ms = []; late = []
        for tau in range(1, 7):
            pair = 7 + tau; b = 32*(tau-1)
            if tau == 1: sp(f, [x for k in (1, 3, 5, 7) for x in w2rd(pair, k)], b)
            else: sp(f, w2rd(pair, 7), b)
            sp(f, cvts(tau-1), b+2, 1 if tau == 1 else 2)
            if tau < 6:
                if tau < self.opt["lastb"] - 7: f.setdefault(b+15, []).append(endpair)
                sp(f, [x for k in (0, 2, 4, 6) for x in w2rd(pair+1, k)], b+16)
                sp(f, [x for k in (1, 3, 5) for x in w2rd(pair+1, k)], b+24)
            ms += mm2(tau, 0) + mm2(tau, 1)
        for t in range(6):
            g = max(g0 + 4*t, 32*t + (10 if t == 0 else 6))
            f.setdefault(g, []).append(store(t, 0)); f.setdefault(g+2, []).append(store(t, 1))
            g += self.opt["lag"]
            if g < 190: f.setdefault(g, []).append(flag(t))
            else: late.append(flag(t))
        sp(f, [f"s_lshl_b32 s64, s{sWV}, 12", f"s_add_u32 s64, s64, {OWN}", f"v_add_u32 v3, s64, v{HA}"], 172)
        self.run(ms, f, look=8)
        self.stamp(6)
        a("s_nop 4")
        for t in range(4):
            a(f"ds_write_b128 v3, {vr(AC2[0]+4*t)} offset:{t*1024}")
        for g in late: g()
        a("s_waitcnt lgkmcnt(0)")
        self.bar()
        self.stamp_out(9)
        a("s_endpgm")

    def helper(self, part):
        a = self.a
        A1, A2, AX = 112, 116, 126
        TW = 128
        sU, sM0, sOff, sXo, sMX = 50, 51, 59, 60, 61
        sPp, sHh, sMir, sGA, sGB, sNext, sG = 36, 37, 38, 39, 4, 5, 6
        def dma(stage, i):
            def g():
                pair, half = stage // 2, stage % 2
                if i == 0:
                    a(f"s_add_u32 m0, s{sM0}, {slot(pair) + half*16384}")
                    if pair < 7:
                        if half == 0: a(f"s_mul_i32 s{sOff}, s{sXo}, {64*3584//128}")
                        else: a(f"s_add_u32 s{sOff}, s{sOff}, {32*3584}")
                    else:
                        a(f"s_add_u32 s{sOff}, s{52 + (pair-6) % 7}, {half*128*896}")
                if pair < 7: a(f"buffer_load_dwordx4 v{A1+i}, s[{SA}:{SA+3}], s{sOff} offen offset:{1024*i} {['', 'nt', 'sc1'][self.opt['wf']]} lds")
                else: a(f"buffer_load_dwordx4 v{A2+i}, s[{SB}:{SB+3}], s{sOff} offen offset:{1024*i} lds")
                self.tag(f"D{stage}")
            return g
        def xdma(p, h):
            def g():
                a(f"s_add_u32 m0, s{sMX}, {XIMG + p*8192 + h*4096}")
                if h == 0 and p > 0:
                    a(f"s_add_u32 s{sXo}, s{sXo}, 128"); a(f"s_cmp_eq_u32 s{sXo}, 896"); a(f"s_cselect_b32 s{sXo}, 0, s{sXo}")
                else: a("s_nop 0")
                a(f"buffer_load_dwordx4 v{AX+h}, s[{SX}:{SX+3}], s{sXo} offen {['', 'nt', 'sc1'][self.opt['xf']]} lds")
            return g
        def dmas(*stages):
            l = []
            for s in stages:
                if 1 < s < 14: l.append(xdma(s // 2, s % 2))
                l += [dma(s, i) for i in range(4)]
            return l
        if part == 0:
            self.tr.reset()
            a(f"s_sub_u32 s{sU}, s{sWV}, 4")
            a("v_bfe_u32 v5, v0, 3, 5")
            a(f"v_lshl_add_u32 v7, v5, 6, s{sR}")
            a("v_mul_u32_u24 v7, 896, v7")
            a("v_lshrrev_b32 v8, 3, v2")
            a("v_xor_b32 v8, v8, v6")
            a(f"v_lshl_add_u32 v{AX}, v8, 4, v7")
            a(f"v_add_u32 v{AX+1}, {32*896}, v{AX}")
            a("v_lshrrev_b32 v3, 4, v2")
            a("v_lshlrev_b32 v3, 1, v3")
            a("v_xor_b32 v3, v3, v6")
            a("v_lshlrev_b32 v13, 4, v3")
            a("v_bfe_u32 v4, v2, 3, 2")
            a("v_lshrrev_b32 v8, 5, v2")
            a("v_lshl_add_u32 v4, v8, 3, v4")
            a("v_mul_u32_u24 v4, 3584, v4")
            a(f"s_lshl_b32 s62, s{sJ}, 9"); a(f"s_lshl_b32 s63, s{sU}, 7"); a("s_add_u32 s62, s62, s63")
            a(f"v_add3_u32 v{A1}, v13, v4, s62")
            for i in range(1, 4):
                a(f"v_add_u32 v{A1+i}, {(16*(i&1) + 4*(i>>1))*3584 - 1024*i}, v{A1}")
            a(f"s_lshl_b32 s{sM0}, s{sU}, 12")
            a(f"s_lshl_b32 s{sMX}, s{sU}, 10")
            a(f"s_lshl_b32 s{sXo}, s{sK}, 7")
            a(f"s_mov_b32 s{SA+2}, {448*1792*2}")
            a(f"s_mov_b32 s{SA+3}, 0x00020000")
            a("s_waitcnt lgkmcnt(0)")
            a(f"s_mov_b32 s{SX}, s4")
            a(f"s_and_b32 s{SX+1}, s5, 0xffff")
            a(f"s_mov_b32 s{SA}, s40")
            a(f"s_and_b32 s{SA+1}, s41, 0xffff")
            for d in [xdma(0, 0), xdma(0, 1)] + dmas(0, 1): d()
            a("s_branch L_helper2")
            self.helper_vm = [set(e) for e in self.tr.vm]
            return
        a.label("L_helper2")
        self.tr.lds, self.tr.vm = [], self.helper_vm
        def mix(ds, work, per):
            work = list(work)
            for d in ds:
                d()
                for _ in range(per):
                    if work: self.emit(work.pop(0))
            for w in work: self.emit(w)

        b = Asm()
        self.tile_order(b)
        b("v_mov_b32 v12, 0xffff0000")
        b("v_lshrrev_b32 v4, 3, v2")
        b(f"s_lshl_b32 s62, s{sJ}, 8"); b(f"s_lshl_b32 s63, s{sU}, 5"); b("s_add_u32 s62, s62, s63")
        b("v_add_u32 v4, s62, v4")
        b("v_mul_u32_u24 v4, 896, v4")
        b(f"v_add_u32 v{A2}, v13, v4")
        for i in range(1, 4):
            b(f"v_add_u32 v{A2+i}, {8*896*i - 1024*i}, v{A2}")
        srd(b, SB, 42, 448*1792*2)
        self.ws_srd(b)
        srd(b, SO, 44, 2048*896)
        b(f"s_and_b32 s{sPp}, s{sU}, 1"); b(f"s_lshr_b32 s{sHh}, s{sU}, 1")
        b(f"s_lshl_b32 s64, s{sPp}, 12"); b(f"s_add_u32 s64, s64, {OUTT}"); b(f"s_lshl_b32 s65, s{sHh}, 2")
        b("v_lshrrev_b32 v3, 5, v2"); b("v_add_u32 v3, s65, v3"); b("v_xor_b32 v3, v3, v6")
        b("v_lshlrev_b32 v3, 4, v3"); b("v_bfe_u32 v4, v2, 4, 1"); b("v_lshl_add_u32 v3, v4, 3, v3")
        b("v_and_b32 v4, 15, v2"); b("v_lshl_add_u32 v3, v4, 7, v3")
        b("v_xor_b32 v4, 32, v3"); b("v_add_u32 v109, s64, v3"); b("v_add_u32 v110, s64, v4")
        b(f"s_add_u32 s64, s{sC}, 7"); b(f"s_sub_u32 s64, s64, s{sK}"); b("s_sub_u32 s65, s64, 7")
        b.lines.append("s_cmp_ge_u32 s64, 7\ns_cselect_b32 s64, s65, s64"); b("s_lshl_b32 s64, s64, 13")
        b(f"s_sub_u32 s64, s64, {OUTT - XIMG}")
        b("v_add_u32 v98, s64, v109"); b("v_add_u32 v99, s64, v110")
        b("s_mov_b32 s66, 0"); b(f"s_lshl_b32 s68, s{sR}, 2")
        early = len(b.lines)
        b(f"s_lshl_b32 s62, s{sC}, 1"); b(f"s_add_u32 s62, s62, s{sHh}")
        b(f"s_lshl_b32 s63, s{sPp}, 5"); b(f"s_add_u32 s63, s63, s{sR}")
        b("s_sub_u32 s64, 13, s62"); b("s_sub_u32 s65, 14, s62")
        b.lines.append("s_cmp_eq_u32 s65, 7\ns_cselect_b32 s65, 0, s65")
        b("s_sub_u32 s66, 64, s63"); b("s_and_b32 s66, s66, 63")
        b.lines.append(f"s_cmp_ge_u32 s62, 7\ns_cselect_b32 s{sMir}, 1, 0\ns_cselect_b32 s64, s64, s62\ns_cselect_b32 s65, s65, s62\n"
                       "s_cselect_b32 s66, s66, s63\ns_cselect_b32 s67, -1.0, 1.0")
        b("s_mul_i32 s66, s66, 7")
        b(f"s_add_u32 s{sGA}, s66, s64"); b(f"s_add_u32 s{sGB}, s66, s65")
        b(f"s_lshl_b32 s{sGA}, s{sGA}, 12"); b(f"s_lshl_b32 s{sGB}, s{sGB}, {7 if self.opt['c0'] else 12}")
        b(f"s_add_u32 s{sGA}, s{sGA}, {GBASE}"); b(f"s_add_u32 s{sGB}, s{sGB}, {C0BASE if self.opt['c0'] else GBASE}")
        b.lines.append(f"s_cmp_eq_u32 s{sMir}, 1\ns_cselect_b32 s{sGB}, s{sGB}, {OOB}")
        b("v_and_b32 v123, 15, v2"); b("v_lshlrev_b32 v123, 4, v123"); b(f"s_lshl_b32 s7, s{sPp}, 3"); b("v_add_u32 v123, s7, v123")
        MS, GO = self.opt["ms"], self.opt["go"]
        b(f"s_mul_i32 s7, s{sR}, {7*MS}"); b(f"s_add_u32 s7, s7, {MBOX}")
        b(f"s_mul_i32 s40, s{sC}, {MS}"); b("s_add_u32 s40, s40, s7"); b(f"s_add_u32 s7, s7, {GO}")
        b(f"s_mul_i32 s41, s64, {MS}"); b("s_add_u32 s41, s41, s7"); b(f"s_mul_i32 s42, s65, {MS}"); b("s_add_u32 s42, s42, s7")
        b(f"s_lshl_b32 s43, s{sR}, 8"); b(f"s_add_u32 s43, s43, {STATS}")
        b("v_lshlrev_b32 v103, 4, v2")
        b(f"s_mul_i32 s64, s{sR}, 344064"); b(f"s_mul_i32 s65, s{sC}, 49152"); b("s_add_u32 s64, s64, s65")
        b(f"s_lshl_b32 s65, s{sHh}, 12"); b("s_add_u32 s64, s64, s65")
        b(f"s_lshl_b32 s65, s{sPp}, 10"); b("s_add_u32 s64, s64, s65"); b(f"s_add_u32 s64, s64, {PBASE}")
        b("v_add_u32 v102, s64, v103")
        b("v_and_b32 v3, 3, v2"); b("v_cmp_eq_u32 vcc, 0, v3")
        b.lines.append(f"s_cmp_eq_u32 s62, 0\ns_cselect_b32 s64, 1, s{sMir}"); b("s_mul_i32 s64, s64, 0xffff")
        b("v_mov_b32 v3, s64"); b("v_lshrrev_b32 v105, 2, v2"); b(f"v_lshlrev_b32 v105, {1 if self.opt['c0'] else 6}, v105")
        b("v_cndmask_b32 v104, 0, v3, vcc")
        for rt in range(2):
            b("v_and_b32 v3, 15, v2")
            b(f"v_lshl_add_u32 v3, v3, 6, s63")
            if rt: b("v_add_u32 v3, 1024, v3")
            b("v_lshrrev_b32 v4, 4, v2"); b("v_lshlrev_b32 v4, 3, v4")
            b("v_mul_u32_u24 v4, v4, v3")
            b("v_cvt_f32_u32 v3, v3"); b("v_cvt_f32_u32 v4, v4")
            b(f"v_mul_f32 v3, {f32(1/2048)}, v3"); b(f"v_mul_f32 v4, {f32(1/2048)}, v4")
            b("v_mul_f32 v3, s67, v3"); b("v_mul_f32 v4, s67, v4")
            for q in range(8):
                b(f"v_fract_f32 v8, v4")
                b(f"v_cos_f32 v{16+q}, v8")
                b(f"v_sin_f32 v{24+q}, v8")
                b("v_add_f32 v4, v4, v3")
            for i in range(4):
                b(f"v_cvt_pk_bf16_f32 v{TW+4*rt+i}, v{16+2*i}, v{17+2*i}")
                b(f"v_cvt_pk_bf16_f32 v{TW+8+4*rt+i}, v{24+2*i}, v{25+2*i}")
        b(f"s_lshl_b32 s64, s{sU}, 12"); b(f"s_add_u32 s64, s64, {GST}")
        b("v_add_u32 v106, s64, v103")
        b("v_lshrrev_b32 v3, 4, v2"); b("v_bfe_u32 v4, v2, 2, 2"); b("v_lshl_add_u32 v3, v3, 3, v4")
        b("v_and_b32 v4, 3, v2"); b("v_lshlrev_b32 v4, 3, v4"); b("v_lshl_add_u32 v3, v3, 7, v4")
        b("v_add_u32 v107, s64, v3")
        b(f"s_lshl_b32 s64, s{sHh}, 13"); b(f"s_lshl_b32 s65, s{sPp}, 11"); b("s_add_u32 s64, s64, s65")
        b(f"s_add_u32 s64, s64, {OWN}"); b("v_add_u32 v108, s64, v103")
        b(f"s_lshl_b32 s64, s{sPp}, 12"); b(f"s_add_u32 s64, s64, {OUTT}"); b(f"s_lshl_b32 s65, s{sHh}, 2")
        b("v_and_b32 v3, 3, v2"); b("v_add_u32 v3, s65, v3"); b("v_bfe_u32 v4, v2, 2, 3"); b("v_xor_b32 v4, v3, v4")
        b("v_lshrrev_b32 v8, 2, v2"); b("v_lshlrev_b32 v4, 4, v4"); b("v_lshl_add_u32 v4, v8, 7, v4")
        b("v_add_u32 v111, s64, v4")
        b("v_lshl_add_u32 v8, v8, 6, s63"); b("v_mul_u32_u24 v8, 896, v8"); b("v_lshl_add_u32 v8, v3, 4, v8")
        b(f"s_lshl_b32 s64, s{sC}, 7"); b("v_add_u32 v120, s64, v8")
        b("v_xor_b32 v121, 48, v2"); b("v_add_u32 v122, 16, v121"); b("v_and_b32 v122, 63, v122")
        b("v_lshlrev_b32 v121, 2, v121"); b("v_lshlrev_b32 v122, 2, v122")
        b("s_mov_b32 s62, 0x00003f80"); b("s_mov_b32 s63, 0x3f800000")
        b(f"s_lshl_b32 s64, s{sHh}, 1"); b("s_lshl_b32 s64, 3, s64")
        b(f"s_mov_b32 s{sNext}, 0"); b(f"s_mov_b32 s{sG}, 0")
        XR, XU = 192, 200
        for i in range(8):
            b(f"v_lshlrev_b32 v{XU+2*i}, 16, v{XR+i}")
            b(f"v_and_b32 v{XU+2*i+1}, v12, v{XR+i}")
        setup = b.lines
        def work(n):
            nonlocal setup
            w = setup[:n]; setup = setup[n:]
            return w
        mix(dmas(2), [], 0)
        self.stamp(1)
        mix([], work(early), 0)
        self.wv(["D0"]); self.bar()
        self.stamp(2)
        mix(dmas(3), [], 0)
        if "trace" in self.abl:
            a("v_mov_b32 v4, 1"); a("v_lshlrev_b32 v3, 12, v0"); a("v_subrev_u32 v3, 0x100000, v3")
            srd(a, SD, 46, 256)
            a(f"buffer_atomic_add v4, v3, s[{SD}:{SD+3}], s68 offen sc1")
        else:
            a(f"s_cmp_lg_u32 s{sU}, 0")
            a("s_cbranch_scc1 L_noready")
            a("s_mov_b32 s69, 1")
            a("s_atomic_add s69, s[46:47], s68")
            a.label("L_noready")
        self.wv(["D1"]); self.bar()
        mix(dmas(4, 5), [], 0)
        self.wv(["D3"]); self.bar()

        for p in range(1, 6):
            mix(dmas(2*p+4, 2*p+5), [], 0)
            self.wv([f"D{2*p+3}"]); self.bar()
        o = self.opt
        for ct in range(2):
            for rt in range(2):
                a(f"ds_read_b64 {vr(XR+(ct*2+rt)*2, 2)}, v{98+ct} offset:{rt*2048}")
        nxt = [16]
        def issue(n, limit):
            st = list(range(nxt[0], min(nxt[0] + n, limit))); nxt[0] += len(st)
            mix(dmas(*st), [], 0)
        issue(2, 18)
        self.wv(["D15"], True); self.bar()
        issue(o["e9"], 22)
        a("s_load_dword s69, s[46:47], s68")
        mix([], work(o["wx"]), 0)
        a("s_waitcnt vmcnt(0)"); self.bar()
        mix([], work(o["wd"]), 0)
        issue(o["nw"], 22)
        self.bar()
        issue(o["nh"], 24)
        a.label("L_rdy")
        a("s_waitcnt lgkmcnt(0)")
        a("s_cmp_ge_u32 s69, 7")
        a("s_cbranch_scc1 L_rdy_ok")
        a("s_load_dword s69, s[46:47], s68 glc")
        a("s_add_u32 s66, s66, 1")
        a(f"s_cmp_lt_u32 s66, {SPIN}")
        a("s_cbranch_scc1 L_rdy")
        a.label("L_rdy_ok")
        self.bar()
        issue(o["n8"], 26)
        self.wv(["D19"]); self.bar()
        issue(o["n9"], 28)
        self.wv(["D21"]); self.bar()
        issue(9, 28)
        self.stamp(3)
        if o["lastb"] == 12:
            mix([], work(40), 0)
            self.wv(["D23"]); self.bar()
            mix([], work(60), 0)
        self.wv(["D27"]); self.bar()
        mix([], work(300), 0)
        PD, SUM, GD, GP, GF, Y, Y2, OW = 144, 16, 32, 48, 52, 68, 84, 216
        cnt = [0]
        def poll():
            a("s_load_dword s52, s[48:49], s40 glc")
        def wait_flag(tau):
            n = cnt[0]; cnt[0] += 1
            a(f"s_lshl_b32 s56, s64, {4*tau}")
            a("s_andn2_b32 s65, s56, s55")
            a(f"s_cbranch_scc0 L_wf{n}_ok")
            a.label(f"L_wf{n}")
            a.lines.append("    s_waitcnt lgkmcnt(0)")
            a("s_or_b32 s55, s55, s52")
            a("s_andn2_b32 s65, s56, s55")
            a(f"s_cbranch_scc0 L_wf{n}_ok")
            poll()
            a("s_add_u32 s66, s66, 1")
            a(f"s_cmp_lt_u32 s66, {SPIN}")
            a(f"s_cbranch_scc1 L_wf{n}")
            a.label(f"L_wf{n}_ok")
        def load_p(tau):
            wait_flag(tau)
            a(f"s_mov_b32 s65, {tau*8192}")
            for ct in range(2):
                a(f"buffer_load_dwordx4 {vr(PD+8*tau+4*ct)}, v102, s[{SW}:{SW+3}], s65 offen offset:{ct*2048} {FL[o['lf']]}")
            if tau in (0, 5): self.stamp(7 if tau == 0 else 8)
        added = [False]
        def add_p(tau):
            self.wv([f"v{PD+8*tau+4}"])
            if tau == 5: self.stamp(9)
            for rt in range(2):
                for ct in range(2):
                    for i in range(2):
                        for h in range(2):
                            d = SUM + (ct*2+rt)*4 + 2*i + h
                            a(f"v_dot2_f32_bf16 v{d}, v{PD+8*tau+4*ct+2*rt+i}, s{62+h}, {f'v{d}' if added[0] else '0'}")
            added[0] = True
        def own():
            self.bar()
            d = OW if added[0] else SUM
            for ct in range(2):
                for rt in range(2):
                    a(f"ds_read_b128 {vr(d+(ct*2+rt)*4)}, v108 offset:{ct*4096 + rt*1024}")
            a("s_waitcnt lgkmcnt(0)")
            if added[0]:
                for i in range(16): a(f"v_add_f32 v{SUM+i}, v{SUM+i}, v{OW+i}")
            added[0] = True
        def load_g(k=None):
            if k is not None: a(f"s_mul_i32 s56, s64, {hex(0x111111 & ((1 << (4*k+4)) - 1))}")
            a.label("L_gw")
            for i in range(3): a(f"s_load_dword s{52+i}, s[48:49], s{40+i} glc")
            a("s_add_u32 s66, s66, 1")
            a("s_waitcnt lgkmcnt(0)")
            a("s_or_b32 s55, s55, s52")
            a(f"s_cmp_ge_u32 s66, {SPIN}")
            a("s_cbranch_scc1 L_gg")
            a("s_lshr_b32 s65, s52, 19")
            a("s_and_b32 s65, s65, s53"); a("s_and_b32 s65, s65, s54")
            a("s_bitcmp1_b32 s65, 5")
            if "nog" not in self.abl: a("s_cbranch_scc0 L_gw")
            if k is not None:
                a.label("L_gw2")
                a("s_andn2_b32 s65, s56, s55")
                a("s_cbranch_scc0 L_gg")
                poll()
                a("s_add_u32 s66, s66, 1")
                a("s_waitcnt lgkmcnt(0)")
                a("s_or_b32 s55, s55, s52")
                a(f"s_cmp_lt_u32 s66, {SPIN}")
                a("s_cbranch_scc1 L_gw2")
            a.label("L_gg")
            for i in range(4):
                a(f"buffer_load_dwordx4 {vr(GD+4*i)}, v103, s[{SW}:{SW+3}], s{sGA} offen offset:{1024*i} {FL[o['gf']]}")
            for i in range(4):
                a(f"buffer_load_ushort v{GP+i}, v105, s[{SW}:{SW+3}], s{sGB} offen offset:{(32 if self.opt['c0'] else 1024)*i} {FL[o['gf']]}")
            a(f"buffer_load_dwordx2 v[124:125], v123, s[{SW}:{SW+3}], s43 offen {FL[o['gf']]}")
            self.stamp(4)
        def proc_g():
            self.wv(["v124"])
            self.stamp(5)
            for i in range(4):
                a(f"v_bfi_b32 v{GD+4*i}, v104, v{GP+i}, v{GD+4*i}")
                a(f"ds_write_b128 v106, {vr(GD+4*i)} offset:{1024*i}")
            for part in range(2):
                for ct in range(2):
                    for h in range(2):
                        a(f"ds_read_b64_tr_b16 {vr(GF+(ct*2+part)*4+2*h, 2)}, v107 offset:{h*512 + part*64 + ct*32}")
            self.run([mfma(Y+(ct*2+rt)*4, GF+(ct*2+part)*4, TW+8*part+4*rt, "0" if part == 0 else None)
                      for part in range(2) for ct in range(2) for rt in range(2)], {})
            for i in range(4): a(f"v_mul_f32 v{112+i}, {f32(-1.4426950408889634)}, v{124+i//2}")
            a("v_mov_b32 v116, 1.0"); a("v_mov_b32 v117, 1.0")
            a(f"s_cmp_eq_u32 s{sMir}, 0")
            a("s_cbranch_scc1 L_nomir")
            a("s_nop 4")
            for ct in range(2):
                for rt in range(2):
                    a(f"ds_bpermute_b32 v{Y2+(ct*2+rt)*4}, v122, v{Y+(ct*2+rt)*4}")
                    for e in range(1, 4):
                        a(f"ds_bpermute_b32 v{Y2+(ct*2+rt)*4+e}, v121, v{Y+((1-ct)*2+rt)*4+4-e}")
            a("s_mov_b64 vcc, 0xffff")
            a("s_waitcnt lgkmcnt(0)")
            for ct in range(2):
                for rt in range(2):
                    a(f"v_cndmask_b32 v{Y+(ct*2+rt)*4}, v{Y2+((1-ct)*2+rt)*4}, v{Y2+(ct*2+rt)*4}, vcc")
                    for e in range(1, 4):
                        a(f"v_mov_b32 v{Y+(ct*2+rt)*4+e}, v{Y2+(ct*2+rt)*4+e}")
            a.label("L_nomir")
            a("s_nop 4")
            for ct in range(2):
                for rt in range(2):
                    for e in range(4):
                        i = Y + (ct*2+rt)*4 + e
                        a(f"v_mul_f32 v{i}, v{i}, v{124+rt}")
            self.stamp(6)
        a("s_mov_b32 s55, 0"); a("s_mov_b32 s52, 0")
        for it in SCRIPTS[o["gs"]].split():
            if it == "F": own()
            elif it == "P": poll()
            elif it == "LG": load_g()
            elif it == "PG": proc_g()
            else: {"W": wait_flag, "L": load_p, "A": add_p, "G": load_g}[it[0]](int(it[1]))
        T = 52
        a(f"s_mov_b32 s65, {16*64*896}")
        for rt in range(2):
            idx = [(ct*2+rt)*4 + e for ct in range(2) for e in range(4)]
            for i in idx[::2]: a(f"v_pk_mul_f32 {vr(T+i,2)}, {vr(SUM+i,2)}, {vr(112+2*rt,2)}")
            for i in idx: a(f"v_exp_f32 v{T+i}, v{T+i}")
            for i in idx[::2]: a(f"v_pk_mul_f32 {vr(Y+i,2)}, {vr(Y+i,2)}, {vr(SUM+i,2)}")
            for i in idx[::2]: a(f"v_pk_add_f32 {vr(T+i,2)}, {vr(T+i,2)}, v[116:117]")
            for i in idx: a(f"v_rcp_f32 v{T+i}, v{T+i}")
            if rt == 1:
                self.wl([f"v{GD}"])
                a(f"buffer_store_dwordx4 {vr(GD)}, v120, s[{SO}:{SO+3}], 0 offen {['', 'sc1', 'nt', 'sc0 sc1'][o['of']]}")
            for i in idx[::2]: a(f"v_pk_fma_f32 {vr(Y+i,2)}, {vr(Y+i,2)}, {vr(T+i,2)}, {vr(XU+i,2)}")
            for ct in range(2):
                n = ct*2 + rt
                for i in range(2): a(f"v_cvt_pk_bf16_f32 v{XR+2*n+i}, v{Y+4*n+2*i}, v{Y+4*n+2*i+1}")
                a(f"ds_write_b64 v{109+ct}, {vr(XR+2*n, 2)} offset:{rt*2048}")
            a(f"ds_read_b128 {vr(GD+4*rt)}, v111 offset:{rt*2048}")
        a("s_waitcnt lgkmcnt(0)")
        a(f"buffer_store_dwordx4 {vr(GD+4)}, v120, s[{SO}:{SO+3}], s65 offen {['', 'sc1', 'nt', 'sc0 sc1'][o['of']]}")
        self.stamp(10)
        self.stamp_out(11)
        a("s_endpgm")

    def dft_head(self):
        a = self.a
        a.label("L_dft")
        self.tr.reset()
        a("v_lshrrev_b32 v5, 3, v0")
        a(f"v_lshl_add_u32 v7, v5, 5, s{sR}")
        a("v_mul_u32_u24 v7, 896, v7")
        a("v_lshl_add_u32 v7, v6, 4, v7")
        a("v_lshrrev_b32 v8, 2, v6")
        a("v_lshl_or_b32 v8, v8, 30, v7")
        a("s_waitcnt lgkmcnt(0)")
        a(f"s_mov_b32 s{SX}, s4")
        a(f"s_and_b32 s{SX+1}, s5, 0xffff")
        for k in range(4):
            for h in range(2):
                a(f"buffer_load_dwordx4 {vr(16+8*k+4*h)}, v{8 if k == 3 else 7}, s[{SX}:{SX+3}], 0 offen offset:{128*k + 448*h}")
        a("s_branch L_dft2")
        self.dft_after_x = [set(e) for e in self.tr.vm]

    def dft(self):
        a = self.a; sp = self.spread
        DXR, DU = 16, 48
        AF, BF, AC, Z, TW = [16, 32], 128, 48, 128, 112
        XA, TA, RS = 248, 250, 254
        sBase = 50
        MS, GO = self.opt["ms"], self.opt["go"]
        a.label("L_dft2")
        self.tr.lds, self.tr.vm = [], self.dft_after_x
        self.ws_srd(a)
        srd(a, SD, 46, 256)
        a("v_mov_b32 v12, 0xffff0000")
        a("v_mov_b32 v244, 0"); a("v_mov_b32 v245, 0"); a("v_mov_b32 v15, 0")
        a("v_bfe_u32 v3, v5, 1, 4"); a("v_and_b32 v4, 1, v5"); a("v_lshl_add_u32 v3, v3, 1, v4")
        a("v_lshrrev_b32 v4, 5, v5"); a("v_lshl_add_u32 v3, v3, 1, v4"); a("v_lshlrev_b32 v3, 2, v3")
        a(f"v_add_u32 v{RS}, {RSL}, v3")
        self.ximg_waddr()
        a("s_mov_b32 s54, 0x0f0f0f0f"); a("s_mov_b32 s55, 0x0f0f0f0f")
        a(f"s_cmp_eq_u32 s{sWV}, 7")
        a("s_cbranch_scc1 L_dft_w7")
        saved7 = [set(e) for e in self.tr.vm]
        a("s_add_u32 s6, s6, L_tab-L_pc"); a("s_addc_u32 s7, s7, 0")
        a(f"s_mul_i32 s52, s{sWV}, 28672"); a("s_add_u32 s52, s52, 8192")
        a(f"v_lshl_add_u32 v{TA}, v2, 4, s52")
        for i in range(1, 4): a(f"v_add_u32 v{TA+i}, {8192*i}, v{TA}")
        a(f"s_lshl_b32 s{sBase}, s{sWV}, 13"); a(f"s_add_u32 s{sBase}, s{sBase}, {DW}")
        self.ximg_raddr(XA, XA+1, DX)
        bl = [f"global_load_dwordx4 {vr(BF+4*n)}, v{TA+n//8}, s[6:7] offset:{1024*(n%8) - 4096}" for n in range(28)]
        def ln(loads):
            for k in range(4):
                self.wv([f"v{DXR+8*k+4}"])
                for i in range(4):
                    x1 = DXR + 8*k + i; x2 = x1 + 4; u = DU + 16*k + 4*i
                    a(f"v_dot2_f32_bf16 v15, v{x1}, v{x1}, v15")
                    a(f"v_lshlrev_b32 v240, 16, v{x1}")
                    a(f"v_and_b32 v241, v12, v{x1}")
                    a(f"v_dot2_f32_bf16 v15, v{x2}, v{x2}, v15")
                    a(f"v_lshlrev_b32 v242, 16, v{x2}")
                    a(f"v_and_b32 v243, v12, v{x2}")
                    a(f"v_pk_add_f32 {vr(u,2)}, v[240:241], v[242:243]")
                    a(f"v_sub_f32 v{u+2}, v240, v242"); a(f"v_sub_f32 v{u+3}, v241, v243")
                    a(f"v_pk_add_f32 v[244:245], v[244:245], {vr(u,2)}")
                    if loads and i % 2 == 1 and k >= self.opt["dk"]: a(loads.pop(0))
            self.stamp(1)
            a("v_add_f32 v14, v244, v245")
            a("s_nop 1")
            for x in self.ln_stats([(13, 14, 15)]): a(x)
            a("v_add_f32 v13, v13, v13")
            a("v_mov_b32 v15, v14")
            a("v_mul_f32 v240, v13, v14"); a("v_mul_f32 v241, v13, v14")
            a(f"ds_write_b32 v{RS}, v14")
            for par in range(2):
                for k in range(4):
                    for i in range(4):
                        u = DU + 16*k + 4*i + 2*par
                        if par == 0: a(f"v_pk_fma_f32 {vr(u,2)}, {vr(u,2)}, v[14:15], v[240:241]")
                        else: a(f"v_pk_mul_f32 {vr(u,2)}, {vr(u,2)}, v[14:15]")
                        a(f"v_cvt_pk_bf16_f32 v{DXR+8*k+4*par+i}, v{u}, v{u+1}")
                    if k == 3: a("s_mov_b64 exec, s[54:55]")
                    a(f"ds_write_b128 v9, {vr(DXR+8*k+4*par)} offset:{k*8192 + par*28672}")
                    if k == 3: a("s_mov_b64 exec, -1")
                    if loads: a(loads.pop(0))
            a("s_waitcnt lgkmcnt(0)")
            self.bar()
        ln(bl)
        self.stamp(2)
        if self.opt["prio"]:
            a(f"s_cmp_ge_u32 s{sWV}, 4"); a("s_cbranch_scc1 L_dft_lo"); a("s_setprio 2"); a.label("L_dft_lo")
        def rds(n):
            par, k = n // 7, n % 7
            return [f"ds_read_b128 {vr(AF[n%2]+4*t)}, v{XA+(k%2)} offset:{par*28672 + (k//2)*8192 + t*1024}" for t in range(4)]
        def mms(n):
            par, k = n // 7, n % 7
            return [mfma(AC + 32*par + 16*im + 4*t, AF[n%2]+4*t, BF+8*n+4*im, "0" if k == 0 else None) for im in range(2) for t in range(4)]
        def zepi(tile):
            s = AC + 16*tile; o = Z + 8*tile; l = []
            for t in range(2):
                for e in range(0, 4, 2):
                    x = s + 4*t + e; y = x + 8
                    l.append(f"v_add_f32 v3, v{x}, v{y}\nv_add_f32 v4, v{x+1}, v{y+1}")
                    l.append(f"v_sub_f32 v10, v{x}, v{y}\nv_sub_f32 v13, v{x+1}, v{y+1}")
                    l.append(f"v_cvt_pk_bf16_f32 v{o+2*t+e//2}, v3, v4")
                    l.append(f"v_cvt_pk_bf16_f32 v{o+4+2*t+e//2}, v10, v13")
            return l
        addr = Asm()
        addr("v_and_b32 v5, 7, v2"); addr("v_xor_b32 v5, v5, v11"); addr("v_lshlrev_b32 v5, 4, v5")
        addr("v_lshl_add_u32 v5, v8, 7, v5"); addr("v_xor_b32 v6, 64, v5")
        addr(f"v_add_u32 v9, s{sBase}, v5"); addr(f"v_add_u32 v7, s{sBase}, v6")
        addr("v_lshrrev_b32 v5, 3, v2"); addr("v_and_b32 v6, 7, v2"); addr("v_xor_b32 v14, v5, v6")
        addr("v_lshlrev_b32 v14, 4, v14"); addr("v_lshl_add_u32 v14, v5, 7, v14"); addr(f"v_add_u32 v14, s{sBase}, v14")
        addr("v_mul_u32_u24 v15, 57344, v5"); addr("v_lshl_add_u32 v15, v6, 4, v15")
        addr(f"s_lshl_b32 s56, s{sWV}, 12"); addr(f"s_lshl_b32 s57, s{sR}, 7"); addr("s_add_u32 s56, s56, s57")
        addr(f"s_add_u32 s56, s56, {GBASE}")
        addr("v_add_u32 v15, s56, v15")
        addr("v_lshlrev_b32 v242, 4, v6"); addr("v_lshl_add_u32 v242, v2, 7, v242"); addr(f"v_add_u32 v242, s{sBase}, v242")
        addr("v_xor_b32 v243, 64, v242")
        addr("v_and_b32 v5, 31, v2"); addr("v_lshrrev_b32 v6, 5, v2"); addr("v_lshl_add_u32 v5, v5, 1, v6")
        addr(f"s_lshl_b32 s56, s{sWV}, 7"); addr(f"s_lshl2_add_u32 s56, s{sR}, s56"); addr(f"s_add_u32 s58, s56, {C0BASE}")
        addr("v_mul_u32_u24 v244, 896, v5")
        addr("v_lshlrev_b32 v5, 2, v2")
        addr("v_mov_b32 v240, 0x80008000"); addr("v_mov_b32 v241, 0x80000000")
        for x in rds(0): a(x)
        a("v_lshlrev_b32 v246, 4, v2")
        bl += [f"global_load_dwordx4 {vr(TW+4*i)}, v246, s[6:7] offset:{1024*i}" for i in range(4)]
        for _ in range(2): a(bl.pop(0))
        ms = []; f = {}
        for n in range(14):
            ms += mms(n)
            if n < 13:
                sp(f, rds(n+1), 8*n)
                f.setdefault(8*n+7, []).append(lambda n=n: self.wv([f"v{BF+8*n+12}"]))
            for g in (4, 5, 6):
                if bl: f.setdefault(8*n+g, []).append(bl.pop(0))
        assert not bl
        sp(f, addr.lines, 20)
        sp(f, zepi(0) + zepi(1), 62)
        f.setdefault(100, []).append(f"buffer_load_dword v6, v5, s[{SD}:{SD+3}], 0 offen sc1")
        self.wv([f"v{BF+4}"])
        self.run(ms, f, look=4)
        self.stamp(3)
        NB, TX, GA, GP, GR = 16, 32, 160, 48, 80
        self.wv([f"v{TW+12}"])
        for i in range(16):
            a(f"v_xor_b32 v{TX+i}, v241, v{TW+i}")
        for x in zepi(2) + zepi(3): a(x)
        for eo in range(2):
            for i in range(8):
                a(f"v_xor_b32 v{NB+8*eo+i}, v240, v{Z+16*eo+8+i}")
        def s1(T):
            par = T >> 1; tw = (TX if T & 1 else TW) + 8*par; g = GA + 16*T; l1 = []; l2 = []
            for eo in range(2):
                za = Z + 16*eo + 4*par; zb = za + 8; nb = NB + 8*eo + 4*par
                l1.append(mfma(g + 4*eo, za, tw, "0")); l2.append(mfma(g + 4*eo, nb, tw+4))
                l1.append(mfma(g + 8 + 4*eo, zb, tw, "0")); l2.append(mfma(g + 8 + 4*eo, za, tw+4))
            return l1 + l2
        def s1epi(T):
            g = GA + 16*T; o = GP + 8*T; l = []
            for part in range(2):
                for e in range(4):
                    l.append(f"v_cvt_pk_bf16_f32 v{o+4*part+e}, v{g+8*part+e}, v{g+8*part+4+e}")
                l.append(f"ds_write_b128 v{7 if part else 9}, {vr(o+4*part)} offset:{T*2048}")
            for n in (2*T, 2*T+1):
                l.append(f"ds_read_b128 {vr(GR+4*n)}, v14 offset:{n*1024}")
            return l
        def gstore(n):
            def g():
                T = n >> 1
                a(f"s_mov_b32 s56, {(16*(n&1) + 32*(T&1) + (T>>1))*28672}")
                self.wl([f"v{GR+4*n}"])
                a(f"buffer_store_dwordx4 {vr(GR+4*n)}, v15, s[{SW}:{SW+3}], s56 offen sc1")
            return g
        f = sp({}, s1epi(0), 15, 2); sp(f, s1epi(1), 22, 2); sp(f, [gstore(0), gstore(1)], 30)
        self.run(s1(0) + s1(1) + s1(2) + s1(3), f)
        c0 = ["ds_read_u16 v10, v242", "ds_read_u16 v13, v243"]
        for x in s1epi(2) + [gstore(2), gstore(3)] + s1epi(3) + c0 + [gstore(n) for n in range(4, 8)]: self.emit(x)
        a("s_waitcnt lgkmcnt(0)")
        a("v_lshl_or_b32 v10, v13, 16, v10")
        if self.opt["c0"]: a(f"buffer_store_dword v10, v244, s[{SW}:{SW+3}], s58 offen sc1")
        self.stamp(4)
        a(f"s_mul_i32 s56, s{sWV}, {MS}"); a(f"s_add_u32 s56, s56, {MBOX + GO}")
        a(f"v_mul_u32_u24 v3, {7*MS}, v2"); a("v_add_u32 v3, s56, v3")
        a("v_mov_b32 v4, 1")
        a("s_mov_b32 s54, 0")
        a.label("L_drdy")
        a("s_waitcnt vmcnt(0)")
        a("v_cmp_le_u32 vcc, 7, v6")
        a("s_add_u32 s54, s54, 1")
        a(f"s_cmp_ge_u32 s54, {SPIN}")
        a("s_cbranch_scc1 L_dgo")
        a("s_cmp_eq_u32 vcc_lo, -1")
        a("s_cbranch_scc1 L_dgo")
        a(f"buffer_load_dword v6, v5, s[{SD}:{SD+3}], 0 offen sc1")
        a("s_branch L_drdy")
        a.label("L_dgo")
        self.tr.reset()
        a("s_mov_b32 exec_hi, 0")
        a(f"buffer_atomic_add v4, v3, s[{SW}:{SW+3}], 0 offen sc1")
        a("s_mov_b64 exec, -1")
        self.stamp(5)
        a("s_branch L_dft_end")
        a.label("L_dft_w7")
        self.tr.lds, self.tr.vm = [], saved7
        ln([])
        a("v_lshlrev_b32 v5, 2, v2")
        a(f"v_add_u32 v3, {RSL}, v5")
        a("ds_read_b32 v4, v3")
        a(f"s_lshl_b32 s56, s{sR}, 8"); a(f"s_add_u32 s56, s56, {STATS}")
        a(f"s_lshl_b32 s57, s{sR}, 2"); a(f"s_mul_i32 s58, s{sR}, {7*MS}"); a(f"s_add_u32 s58, s58, {MBOX}")
        a("s_waitcnt lgkmcnt(0)")
        a(f"buffer_store_dword v4, v5, s[{SW}:{SW+3}], s56 offen sc1")
        a(f"v_mul_u32_u24 v3, {MS}, v2"); a("v_mov_b32 v6, 0x1000000")
        a("s_mov_b32 s54, 0")
        a("s_waitcnt vmcnt(0)")
        a.label("L_w7rdy")
        a("s_load_dword s55, s[46:47], s57 glc")
        a("s_add_u32 s54, s54, 1")
        a("s_waitcnt lgkmcnt(0)")
        a(f"s_cmp_ge_u32 s54, {SPIN}")
        a("s_cbranch_scc1 L_w7go")
        a("s_cmp_ge_u32 s55, 7")
        a("s_cbranch_scc0 L_w7rdy")
        a.label("L_w7go")
        a("s_mov_b64 exec, 0x7f")
        a(f"buffer_atomic_or v6, v3, s[{SW}:{SW+3}], s58 offen sc1")
        a("s_mov_b64 exec, -1")
        a.label("L_dft_end")
        self.stamp_out(6)
        a.label("L_end")
        a("s_endpgm")

    def table(self):
        a = self.a
        def row(v): a.raw(".quad " + ",".join("0x%x" % (v[4*i] | v[4*i+1] << 16 | v[4*i+2] << 32 | v[4*i+3] << 48) for i in range(len(v)//4)))
        a.raw(".p2align 8")
        a.raw(".type L_tab,@object")
        a.label("L_tab")
        for par in range(2):
            for fn in (math.cos, math.sin):
                for lane in range(64):
                    t0 = 2*(lane & 15) + par; g = lane >> 4
                    row([bf16(fn(-2*math.pi*(((16*(q >> 2) + 4*g + (q & 3))*t0) % 64)/64)) for q in range(8)])
        tab = {fn: [bf16(round(fn(-2*math.pi*m/448), 15)) for m in range(448)] for fn in (math.cos, math.sin)}
        for w in range(7):
            for par in range(2):
                for k in range(7):
                    for fn in (math.cos, math.sin):
                        for l0 in range(0, 64, 8):
                            v = []
                            for lane in range(l0, l0 + 8):
                                e = 32*w + 2*(lane & 15) + par or 224
                                v += [tab[fn][(e*(32*k + 8*(lane >> 4) + q)) % 448] for q in range(8)]
                            row(v)
        a.raw(f".size L_tab, {4096 + 7*28672}")

    def build(self):
        a = self.a
        K = NAME + "_kernel"
        kernel_begin(a, K)
        self.prologue()
        self.helper(0)
        self.dft_head()
        a.raw(".p2align 3")
        a.label("L_compute")
        self.compute()
        self.helper(1)
        self.dft()
        self.table()
        hdr = open("cdna_kernels/" + NAME + ".s.ref").read().split("; Override launch")[0]
        return hdr + file_text([f"grid=(256,1,1) block=(512,1,1) lds={LDS_BYTES}"], a.text(), [descriptor(K, 256, 102, 256)])

if __name__ == "__main__":
    import argparse, subprocess
    ap = argparse.ArgumentParser()
    ap.add_argument("-o", default="k.s"); ap.add_argument("--mapping", default="4")
    ap.add_argument("--abl", default=""); ap.add_argument("--stamps", action="store_true"); ap.add_argument("--opt", default="")
    r = ap.parse_args()
    opt = {k: int(v) for k, v in (x.split("=") for x in r.opt.split(",") if x)}
    g = Gen(r.mapping, r.stamps, [x for x in r.abl.split(',') if x], opt)
    t = g.build()
    open(r.o, "w").write(t)
    rc = subprocess.run(["clang", "-x", "assembler", "-target", "amdgcn-amd-amdhsa", "-mcpu=gfx950", "-c", r.o, "-o", r.o + ".o"], capture_output=True, text=True)
    for e in g.tr.errors[:20]: print("WAIT:", e)
    print(r.o, "hazards:", hazcheck.check(t), "waits:", len(g.tr.errors), "asm:", "ok" if rc.returncode == 0 else rc.stderr[:2000])
```

```python
import sys, struct, math
from asmlib import *
import hazcheck

MBOX = 0xc00000
PBASE = 0x100000
GBASE = 0x1000000
C0BASE = 0x40000
STATS = 0x80000
STAMP = 0x1400000
WS_BYTES = 0x1800000
OOB = 0x7ff00000
XIMG = 98304
HIMG = 0
GST = XIMG
OWN = XIMG + 16384
OUTT = XIMG + 32768
LDS_BYTES = 163840
DX = 0
DW = 57344
SX, SA, SB, SW, SO, SD = 8, 12, 16, 20, 24, 28
sR, sJ, sC, sWV, sK = 32, 33, 34, 35, 3
SPIN = 20000
RSL = LDS_BYTES - 256

def slot(pair):
    return 32768 * (pair % 3 if pair < 9 else {9: 3, 10: 4, 11: 1, 12: 0, 13: 2}[pair])

def f32(x):
    return "0x%08x" % struct.unpack("<I", struct.pack("<f", x))[0]

def bf16(x):
    u = struct.unpack("<I", struct.pack("<f", x))[0]
    return ((u + 0x7fff + ((u >> 16) & 1)) >> 16) & 0xffff

def vr(b, n=4):
    return f"v[{b}:{b+n-1}]"

def mfma(d, a, b, c=None):
    cc = vr(d) if c is None else c
    return f"v_mfma_f32_16x16x32_bf16 {vr(d)}, {vr(a)}, {vr(b)}, {cc}"

SCRIPTS = [
    "W3 L0 L1 P A0 L2 P A1 L3 P A2 LG A3 L4 L5 PG F A4 A5",
    "LG PG W3 L0 L1 P A0 L2 P A1 L3 P A2 L4 P A3 L5 F A4 A5",
    "W4 L0 L1 P A0 L2 P A1 L3 P A2 LG A3 L4 L5 PG F A4 A5",
    "W2 L0 L1 P A0 L2 P A1 L3 P A2 LG A3 L4 L5 PG F A4 A5",
    "W3 L0 L1 L2 P A0 L3 P A1 LG A2 L4 A3 L5 PG F A4 A5",
    "LG PG W4 L0 L1 L2 P A0 L3 A1 L4 A2 L5 F A3 A4 A5",
    "LG PG W5 L0 L1 L2 L3 L4 L5 F A0 A1 A2 A3 A4 A5",
    "LG PG L0 L1 P A0 L2 P A1 L3 P A2 L4 P A3 L5 F A4 A5",
    "G5 L0 L1 L2 L3 L4 L5 PG F A0 A1 A2 A3 A4 A5",
    "G4 P L0 L1 L2 L3 L4 L5 PG F A0 A1 A2 A3 A4 A5",
    "G3 P L0 L1 L2 L3 L4 L5 PG F A0 A1 A2 A3 A4 A5",
    "G3 W4 L0 L1 L2 L3 L4 L5 PG F A0 A1 A2 A3 A4 A5",
    "G3 W5 L0 L1 L2 L3 L4 L5 PG F A0 A1 A2 A3 A4 A5",
    "G2 PG W5 L0 L1 L2 L3 L4 L5 F A0 A1 A2 A3 A4 A5",
]

FL = ['sc1', 'sc0 sc1', 'nt', 'sc1 nt', 'sc0 sc1 nt', '']

class Gen:
    def __init__(self, mapping="4", stamps=False, abl=(), opt=None):
        self.tr = hazcheck.Tracker()
        self.a = Asm(self.tr); self.mapping = mapping; self.stamps = stamps; self.abl = set(abl)
        self.opt = dict(prio=1, e9=2, wx=40, wd=35, nw=1, nh=2, n8=2, n9=3, lastb=12, gs=6, dk=0, xb=44, of=0, c0=0, wo=0, lf=0, gf=0, sf=0, pl=1, kx=0, rx=0, nk=2, sfirst=10, refl=1, ms=4352, go=0x100080, slp=0, lag=80, w0=110, wp=30, kj=0, xf=0, wf=0, xa=0)
        self.opt.update(opt or {})
        self.PR, self.PC, self.PT = (57344, 8192, 224*8192) if self.opt['pl'] else (344064, 49152, 8192)

    def tag(self, name):
        self.tr.vm[-1].add(name)
    def wl(self, regs):
        n = self.tr.need(self.tr.lds, set(regs))
        if n is not None: self.a(f"s_waitcnt lgkmcnt({min(n, 15)})")
    def wv(self, regs, lgkm0=False):
        n = self.tr.need(self.tr.vm, set(regs))
        if n is not None and lgkm0: self.a(f"s_waitcnt vmcnt({n}) lgkmcnt(0)")
        elif n is not None: self.a(f"s_waitcnt vmcnt({n})")
        elif lgkm0: self.a("s_waitcnt lgkmcnt(0)")
    def emit(self, item):
        if callable(item): item()
        else: self.a(item)
    def run(self, ms, fills, look=4):
        R = lambda m: hazcheck.Ins(m, 0).r
        for g, m in enumerate(ms):
            if self.tr.need(self.tr.lds, R(m)) is not None:
                regs = set()
                for m2 in ms[g:g+look]: regs |= R(m2)
                self.wl(regs)
            self.a(m)
            for f in fills.get(g, []): self.emit(f)
    @staticmethod
    def spread(fills, items, g0, per=1):
        g = g0; n = 0
        for it in items:
            fills.setdefault(g, []).append(it); n += 1
            if n == per: n = 0; g += 1
        return fills

    def stamp(self, i):
        if self.stamps:
            self.a(f"{'s_memrealtime' if 'rt' in self.abl else 's_memtime'} s[{72+2*i}:{73+2*i}]")

    def bar(self):
        a = self.a
        if "trace" in self.abl:
            a("s_waitcnt lgkmcnt(0)")
            a("s_mov_b32 m0, s100"); a("s_add_u32 s100, s100, 2")
            a("v_writelane_b32 v1, s96, m0"); a("s_add_u32 m0, m0, 1"); a("s_nop 0")
            a("v_writelane_b32 v1, s98, m0")
            a("s_memtime s[96:97]")
            a("s_barrier")
            a("s_memtime s[98:99]")
        else:
            a("s_barrier")

    def stamp_out(self, n):
        if not self.stamps: return
        a = self.a
        a("s_memrealtime s[68:69]")
        a("s_getreg_b32 s67, hwreg(HW_REG_XCC_ID)")
        a("s_waitcnt vmcnt(0) lgkmcnt(0)")
        a("s_lshl_b32 s66, s33, 8"); a("s_or_b32 s67, s67, s66")
        a("s_lshl_b32 s66, s32, 16"); a("s_or_b32 s67, s67, s66")
        a("s_lshl_b32 s66, s34, 24"); a("s_or_b32 s67, s67, s66")
        a("v_mov_b32 v16, s70"); a("v_mov_b32 v17, s68"); a("v_mov_b32 v18, s67")
        for i in range(1, 14):
            if i < n:
                a(f"s_sub_u32 s66, s{72+2*i}, s72"); a(f"v_mov_b32 v{18+i}, s66")
            else:
                a(f"v_mov_b32 v{18+i}, 0")
        a("s_lshl_b32 s66, s2, 3"); a(f"s_add_u32 s66, s66, s{sWV}"); a("s_lshl_b32 s66, s66, 6")
        a(f"s_add_u32 s66, s66, {STAMP}")
        a("s_mov_b64 exec, 1")
        for i in range(4):
            a(f"buffer_store_dwordx4 {vr(16+4*i)}, off, s[{SW}:{SW+3}], s66 offset:{16*i}")
        a("s_mov_b64 exec, -1")
        if "trace" in self.abl:
            a("s_mov_b32 m0, s100"); a("s_add_u32 s100, s100, 2")
            a("v_writelane_b32 v1, s96, m0"); a("s_add_u32 m0, m0, 1"); a("s_nop 0")
            a("v_writelane_b32 v1, s98, m0")
            a("v_subrev_u32 v1, s72, v1")
            a("s_lshl_b32 s66, s2, 3"); a(f"s_add_u32 s66, s66, s{sWV}"); a("s_lshl_b32 s66, s66, 8")
            a(f"s_add_u32 s66, s66, {STAMP + 0x40000}")
            a("v_lshlrev_b32 v3, 2, v2")
            a(f"buffer_store_dword v1, v3, s[{SW}:{SW+3}], s66 offen")

    def prologue(self):
        a = self.a
        if self.stamps:
            a("s_memrealtime s[70:71]")
        self.stamp(0)
        if "trace" in self.abl: a("s_mov_b32 s100, 0")
        a("s_load_dwordx2 s[4:5], s[0:1], 0")
        a("s_load_dwordx8 s[40:47], s[0:1], 48")
        a("s_load_dwordx2 s[48:49], s[0:1], 80")
        a("s_cmp_ge_u32 s2, 256")
        a("s_cbranch_scc1 L_end")
        a("s_getpc_b64 s[6:7]")
        a.label("L_pc")
        a("s_bfe_u32 s50, s2, 0x30003")
        a("s_lshl_b32 s50, s50, 12")
        a("v_lshrrev_b32 v1, 6, v0")
        a("v_and_b32 v2, 63, v0")
        a("v_lshl_add_u32 v3, v1, 2, v2")
        a("v_lshl_add_u32 v3, v3, 7, s50")
        a(f"v_readfirstlane_b32 s{sWV}, v1")
        a("s_mov_b64 exec, 15")
        a("global_load_dword v1, v3, s[6:7]")
        a("s_mov_b64 exec, -1")
        if self.mapping.startswith("b"):
            lb = {"b4": 2, "b2": 1}[self.mapping]
            a("s_lshr_b32 s50, s2, 3")
            a(f"s_and_b32 s51, s2, {(1 << lb) - 1}")
            a("s_mul_i32 s52, s51, 28"); a("s_add_u32 s52, s52, s50")
            a(f"s_lshr_b32 s{sJ}, s52, {2+lb}")
            a(f"s_and_b32 s52, s52, {(4 << lb) - 1}")
            a("s_lshl2_add_u32 s51, s51, s50"); a("s_sub_u32 s51, s51, 28")
            a("s_cmp_ge_u32 s50, 28")
            a(f"s_cselect_b32 s{sJ}, 7, s{sJ}")
            a("s_cselect_b32 s50, s51, s52")
            a(f"s_bfe_u32 s51, s2, {hex(((3 - lb) << 16) | lb)}")
            a(f"s_lshl_b32 s{sR}, s50, {3-lb}"); a(f"s_or_b32 s{sR}, s{sR}, s51")
        elif self.mapping == "g1":
            a(f"s_lshr_b32 s{sJ}, s2, 5")
            a("s_and_b32 s51, s2, 7"); a("s_sub_u32 s52, 16, s51")
            a("s_cmp_eq_u32 s51, 0"); a("s_cselect_b32 s52, 8, s52")
            a("s_bitcmp1_b32 s2, 3"); a("s_cselect_b32 s51, s52, s51")
            a("s_and_b32 s52, s2, 16"); a(f"s_add_u32 s{sR}, s51, s52")
            a("s_bfe_u32 s50, s2, 0x20003")
        else:
            m = int(self.mapping); lb = {8: 3, 4: 2, 2: 1, 1: 0}[m]
            a(f"s_and_b32 s{sJ}, s2, {m-1}")
            a(f"s_lshr_b32 s50, s2, {5+lb}")
            a(f"s_lshl_b32 s50, s50, {lb}")
            a(f"s_or_b32 s{sJ}, s{sJ}, s50")
            a(f"s_bfe_u32 s{sR}, s2, {hex((5 << 16) | lb)}")
            a(f"s_lshr_b32 s50, s{sR}, {3-lb}")
        nk = self.opt["nk"]
        if self.opt["kj"]: nk = 0; a(f"s_min_u32 s{sK}, s{sJ}, 6")
        if nk == 1: a(f"s_mov_b32 s{sK}, 0")
        elif nk == 2: a("s_and_b32 s51, s50, 1"); a(f"s_mul_i32 s{sK}, s51, 3")
        elif nk == 4: a("s_and_b32 s51, s50, 3"); a(f"s_lshl_b32 s{sK}, s51, 1")
        if self.opt["rx"] == 1: a("s_and_b32 s50, s2, 7")
        if self.opt["rx"] == 2: a("s_and_b32 s50, s50, 1"); a("s_mul_i32 s50, s50, 3"); a("s_and_b32 s51, s2, 7"); a("s_add_u32 s50, s50, s51")
        if self.opt["refl"]:
            a(f"s_sub_u32 s50, 32, s{sR}"); a(f"s_min_u32 s50, s50, s{sR}"); a("s_lshr_b32 s50, s50, 1")
        a(f"s_add_u32 s50, s50, s{sJ}")
        a("s_mul_i32 s51, s50, 37")
        a("s_lshr_b32 s51, s51, 8")
        a("s_mul_i32 s51, s51, 7")
        a(f"s_sub_u32 s{sC}, s50, s51")
        if self.opt["refl"]:
            a(f"s_sub_u32 s51, 6, s{sC}"); a(f"s_cmp_gt_u32 s{sR}, 16"); a(f"s_cselect_b32 s{sC}, s51, s{sC}")
        if nk == 7: a(f"s_mov_b32 s{sK}, s{sC}")
        if self.opt["kx"]:
            a("s_and_b32 s51, s2, 7"); a(f"s_mul_i32 s51, s51, {self.opt['kx']}"); a(f"s_add_u32 s50, s51, s{sK}")
            a("s_mul_i32 s51, s50, 37"); a("s_lshr_b32 s51, s51, 8"); a("s_mul_i32 s51, s51, 7"); a(f"s_sub_u32 s{sK}, s50, s51")
        a("v_and_b32 v6, 7, v0")
        a(f"s_mov_b32 s{SX+2}, {2048*896}")
        a(f"s_mov_b32 s{SX+3}, 0x00020000")
        a(f"s_cmp_eq_u32 s{sJ}, 7")
        a("s_cbranch_scc1 L_dft")
        a(f"s_cmp_lt_u32 s{sWV}, 4")
        a("s_cbranch_scc1 L_compute")

    def ws_srd(self, a):
        if "pick" in self.abl:
            a.lines.append("    s_load_dword s101, s[48:49], 0\n    s_waitcnt lgkmcnt(0)\n    s_and_b32 s101, s101, 0x0e000000\n    s_add_u32 s48, s48, s101\n    s_addc_u32 s49, s49, 0")
        if self.opt["wo"]:
            a.lines.append(f"    s_add_u32 s48, s48, {self.opt['wo'] << 20}\n    s_addc_u32 s49, s49, 0")
        srd(a, SW, 48, WS_BYTES)

    def tile_order(self, a):
        a(f"s_lshl_b32 s52, s{sC}, 7")
        for k in range(1, 7):
            a.lines.append(f"    s_add_u32 s{52+k}, s{51+k}, 128\n    s_cmp_eq_u32 s{52+k}, 896\n    s_cselect_b32 s{52+k}, 0, s{52+k}")

    def ximg_waddr(self):
        a = self.a
        a("v_lshrrev_b32 v8, 2, v6")
        a("v_and_b32 v11, 3, v6")
        a("v_mad_u32_u24 v9, v8, 12, v11")
        a("v_and_b32 v13, 15, v5")
        a("v_xor_b32 v9, v9, v13")
        a("v_lshlrev_b32 v9, 4, v9")
        a("v_lshl_add_u32 v9, v11, 8, v9")
        a("v_lshl_add_u32 v9, v8, 12, v9")
        a("v_lshrrev_b32 v13, 4, v5")
        a("v_lshl_add_u32 v9, v13, 10, v9")

    def ximg_raddr(self, d0, d1, base):
        a = self.a
        a("v_and_b32 v8, 15, v2")
        a("v_lshrrev_b32 v11, 4, v2")
        a(f"v_xor_b32 v{d0}, v8, v11")
        a(f"v_lshlrev_b32 v{d0}, 4, v{d0}")
        a(f"v_lshl_add_u32 v{d0}, v11, 8, v{d0}")
        a(f"v_xor_b32 v{d1}, {12*16}, v{d0}")
        if base: a(f"v_add_u32 v{d0}, {base}, v{d0}")
        a(f"v_add_u32 v{d1}, {base+4096}, v{d1}")

    def ln_stats(self, sets):
        l = []
        for pat in ("quad_perm:[1,0,3,2]", "quad_perm:[2,3,0,1]", "row_half_mirror"):
            for m, s_, q in sets:
                l.append(f"v_add_f32_dpp v{s_}, v{s_}, v{s_} {pat} row_mask:0xf bank_mask:0xf")
                l.append(f"v_add_f32_dpp v{q}, v{q}, v{q} {pat} row_mask:0xf bank_mask:0xf")
            if len(sets) == 1: l.append("s_nop 0")
        for m, s_, q in sets:
            l += [f"v_mul_f32 v{m}, {f32(-1/448)}, v{s_}", f"v_mul_f32 v{q}, {f32(1/448)}, v{q}", f"v_fma_f32 v{q}, -v{m}, v{m}, v{q}",
                  f"v_max_f32 v{q}, 0, v{q}", f"v_add_f32 v{q}, {f32(1e-5)}, v{q}", f"v_rsq_f32 v{s_}, v{q}"]
        return l

    def compute(self):
        a = self.a; sp = self.spread
        WF = [16, 32]; XF = [48, 64]; ACC = 128; AC2 = [48, 64]; HT = 80
        WA, XA, W2, HA, PA, HW, W2X = 112, 120, 122, 124, 125, 126, 127
        CS, XS, SPA, SPI, CA, MB = 192, 200, 208, 212, 216, 224
        FA, FB = 13, 5
        sP, sF = 4, 50
        def HF(k, t): return (192 if k % 2 == 0 else 128) + ((k // 2)*4 + t)*4
        def PK(tau): return 80 + 8*(tau % 4)
        self.tr.reset()
        a("s_waitcnt lgkmcnt(0)")
        self.ws_srd(a)
        a(f"s_cmp_lg_u32 s{sWV}, 0")
        a("s_cbranch_scc1 L_noclean")
        MS, GO = self.opt["ms"], self.opt["go"]
        a(f"s_mul_i32 s64, s{sR}, 7"); a(f"s_add_u32 s64, s64, s{sC}"); a(f"s_mul_i32 s64, s64, {MS}"); a(f"s_add_u32 s64, s64, {MBOX}")
        a(f"v_mul_u32_u24 v3, {GO}, v2")
        a("v_mov_b32 v4, 0")
        a("s_mov_b64 exec, 3")
        a(f"buffer_store_dword v4, v3, s[{SW}:{SW+3}], s64 offen sc1")
        a("s_mov_b64 exec, -1")
        a.label("L_noclean")
        self.tile_order(a)
        a("v_mov_b32 v12, 0xffff0000")
        for i in range(20): a(f"v_mov_b32 v{CS+i}, 0")
        a(f"v_mov_b32 v{SPI}, 0x4444"); a(f"v_mov_b32 v{SPI+1}, 0x4444")
        a("s_mov_b32 exec_lo, 0x11111111"); a("s_mov_b32 exec_hi, 0x22222222")
        for i in range(4): a(f"v_mov_b32 v{SPA+i}, 0x3f803f80")
        a("s_mov_b32 exec_lo, 0xf0f0f0f0"); a("s_mov_b32 exec_hi, 0xf0f0f0f0")
        a(f"v_mov_b32 v{SPI}, 0xeeee")
        a("s_mov_b32 exec_lo, 0xff00ff00"); a("s_mov_b32 exec_hi, 0xff00ff00")
        a(f"v_mov_b32 v{SPI+1}, 0xeeee")
        a("s_mov_b64 exec, -1")
        a("v_lshrrev_b32 v3, 2, v2")
        a("v_lshlrev_b32 v3, 7, v3")
        a("v_and_b32 v4, 3, v2")
        a("v_lshl_add_u32 v3, v4, 3, v3")
        a("v_bfe_u32 v4, v2, 3, 2")
        a("v_lshl_add_u32 v3, v4, 5, v3")
        a(f"s_lshl_b32 s64, s{sWV}, 12")
        a(f"s_lshl_b32 s65, s{sWV}, 5")
        for u in range(4):
            a(f"v_xor_b32 v{WA+u}, {32*u}, v3")
            a(f"v_add_u32 v{WA+u}, s64, v{WA+u}")
            a(f"v_add_u32 v{WA+4+u}, 0x10000, v{WA+u}")
        a(f"v_xor_b32 v{W2}, s65, v3")
        a(f"v_add_u32 v{W2+1}, 0x10000, v{W2}")
        a(f"v_add_u32 v{W2X}, 0x20000, v{W2}")
        a("v_and_b32 v8, 15, v2")
        a("v_lshrrev_b32 v4, 4, v2")
        a(f"v_xor_b32 v{XA}, v4, v6")
        a(f"v_lshlrev_b32 v{XA}, 4, v{XA}")
        a(f"v_lshl_add_u32 v{XA}, v8, 7, v{XA}")
        a(f"v_add_u32 v{XA}, {XIMG}, v{XA}")
        a(f"v_xor_b32 v{XA+1}, 64, v{XA}")
        a(f"v_lshlrev_b32 v{HA}, 4, v2")
        a(f"s_lshl_b32 s64, s{sWV}, 13")
        a(f"v_add_u32 v{HW}, s64, v{HA}")
        a(f"s_mul_i32 s64, s{sR}, {self.PR}"); a(f"s_lshl_b32 s65, s{sWV}, 11"); a("s_add_u32 s64, s64, s65")
        a(f"s_add_u32 s64, s64, {PBASE}")
        a(f"v_lshl_add_u32 v{PA}, v2, 4, s64")
        a(f"s_mul_i32 s64, s{sR}, {7*MS}"); a(f"s_add_u32 s64, s64, {MBOX}")
        for t in range(6):
            a(f"s_mul_i32 s{sP+t}, s{53+t}, {self.PC//128}"); a(f"s_add_u32 s{sP+t}, s{sP+t}, {self.PT*t}")
        for t in range(6):
            a(f"s_mul_i32 s{sF+t}, s{53+t}, {MS//128}"); a(f"s_add_u32 s{sF+t}, s{sF+t}, s64")
        a(f"v_lshlrev_b32 v{FA}, 25, v2")
        a(f"s_lshl_b32 s64, 1, s{sWV}")
        for t in range(6): a(f"v_lshlrev_b32_e64 v{FB+t}, {4*t}, s64")
        a("s_waitcnt vmcnt(0)")

        def ring(pair):
            p = pair % 3
            return (1, 0) if p == 2 else (0, p*32768)
        def wrd(pair, half, u):
            hi, off = ring(pair)
            return [f"ds_read_b64_tr_b16 {vr(WF[half]+4*u+2*h, 2)}, v{WA+4*hi+u} offset:{off + half*16384 + h*2048}" for h in range(2)]
        def xrd(pair, half, t):
            return f"ds_read_b128 {vr(XF[half]+4*t)}, v{XA+half} offset:{pair*8192 + t*2048}"
        def rd_even(p):
            x = [xrd(p, 0, t) for t in range(4)]
            return [x[0]] + wrd(p, 0, 0) + x[1:] + wrd(p, 0, 1) + wrd(p, 0, 2) + wrd(p, 0, 3)
        def rd_odd(p):
            return wrd(p, 1, 0) + wrd(p, 1, 1) + [xrd(p, 1, t) for t in range(4)] + wrd(p, 1, 2) + wrd(p, 1, 3)
        def m1(half, u, t, zero=False):
            return mfma(ACC + (u*4+t)*4, WF[half]+4*u, XF[half]+4*t, "0" if zero else None)
        def smf(half, v):
            return f"v_smfmac_f32_16x16x64_bf16 {vr(CS+4*v)}, {vr(SPA)}, {vr(WF[half]+8*v, 8)}, v{SPI}"
        def mu(half, u, zero=False):
            return [m1(half, u, t, zero) for t in range(4)]
        def smx(half, v):
            return f"v_smfmac_f32_16x16x64_bf16 {vr(XS+4*v)}, {vr(SPA)}, {vr(XF[half]+8*v, 8)}, v{SPI+1}"
        def mm1(half, zero=False):
            return (mu(half, 0, zero) + mu(half, 1, zero) + [smf(half, 0), smx(half, 0)]
                    + mu(half, 2, zero) + mu(half, 3, zero) + [smf(half, 1), smx(half, 1)])
        def csprep(v):
            l = []
            for i in range(2):
                c = CS + 4*v + i; o = CA + 2*(2*v+i)
                l += [f"v_mul_f32 v{c}, {f32(-1/448)}, v{c}", f"v_cvt_pk_bf16_f32 v{o}, v{c}, v{c}", f"v_and_b32 v3, v12, v{o}",
                      f"v_sub_f32 v3, v{c}, v3", f"v_cvt_pk_bf16_f32 v{o}, v{c}, v3", f"v_mov_b32 v{o+1}, v{o}"]
            return l
        def mprep():
            l = []
            for t in range(4):
                c = XS + 4*(t//2) + t%2; o = MB + 2*t
                l += [f"v_cvt_pk_bf16_f32 v{o}, v{c}, v{c}", f"v_and_b32 v3, v12, v{o}", f"v_sub_f32 v3, v{c}, v3", f"v_cvt_pk_bf16_f32 v{o+1}, v3, v3"]
            return l
        def r1(v):
            return [f"v_mfma_f32_16x16x16_bf16 {vr(ACC+(u*4+t)*4)}, {vr(CA+2*u, 2)}, {vr(MB+2*t, 2)}, {vr(ACC+(u*4+t)*4)}"
                    for t in range(4) for u in (2*v, 2*v+1)]
        def w2rd(pair, k):
            sl = slot(pair)
            reg, off = [W2, W2+1, W2X][sl >> 16], sl & 0xffff
            return [f"ds_read_b64_tr_b16 {vr(WF[k%2]+4*(k//2)+2*h, 2)}, v{reg} offset:{off + k*4096 + h*2048}" for h in range(2)]
        def m2(tau, k):
            return [mfma(AC2[tau % 2]+4*t, WF[k%2]+4*(k//2), HF(k, t), "0" if k == 0 else None) for t in range(4)]
        def mm2(tau, par):
            return [m for k in range(par, 8, 2) for m in m2(tau, k)]
        def hrd(k):
            return [f"ds_read_b128 {vr(HF(k, t))}, v{HA} offset:{k*4096 + t*1024}" for t in range(4)]
        def endpair():
            a("s_waitcnt lgkmcnt(0)"); self.bar()

        self.stamp(1)
        self.bar()
        self.stamp(2)
        for r in rd_even(0): a(r)
        self.bar()
        ro = rd_odd(0)
        for r in ro[:3]: a(r)
        self.run(mm1(0, True), sp({}, ro[3:], 0))
        endpair()
        def reads(p):
            f = sp({}, rd_even(p), 0); sp(f, rd_odd(p)[:4], 13); sp(f, rd_odd(p)[4:], 20)
            return f
        for p in range(1, 6):
            self.run(mm1(1) + mm1(0), reads(p), look=10)
            endpair()
        self.stamp(3)
        def epi(v, t):
            o = HT + 4*(v*4+t); l = []
            for i in range(2):
                s = ACC + ((2*v+i)*4+t)*4
                l.append(f"v_cvt_pk_bf16_f32 v{o+2*i}, v{s}, v{s+1}")
                l.append(f"v_cvt_pk_bf16_f32 v{o+2*i+1}, v{s+2}, v{s+3}")
            for i in range(4):
                l.append(f"v_pk_max_i16 v{o+i}, v{o+i}, 0")
            return l
        ms = (mm1(1) + mu(0, 0) + mu(0, 1) + [smf(0, 0), smx(0, 0), smx(0, 1), smf(1, 0), smx(1, 0), smx(1, 1)]
              + mu(1, 0) + mu(1, 1) + mu(0, 2) + mu(0, 3) + [smf(0, 1), smf(1, 1)]
              + r1(0) + mu(1, 2) + mu(1, 3) + r1(1))
        f = reads(6)
        f.setdefault(self.opt["xb"], []).append(endpair)
        sp(f, ["s_nop 2", "s_nop 2"], 35); sp(f, csprep(0) + mprep(), 37, 2)
        e0 = [x for t in range(4) for x in epi(0, t)]
        sp(f, [x for k in (0, 2, 4, 6, 1, 3) for x in w2rd(7, k)], 51); sp(f, w2rd(7, 5) + w2rd(7, 7), 68)
        sp(f, e0[:3], 57); sp(f, csprep(1)[:3], 60); sp(f, csprep(1)[3:], 63, 3); sp(f, e0[3:7], 66, 2); sp(f, e0[7:23], 68, 2)
        self.run(ms, f, look=3)
        for x in e0[23:] + [x for t in range(4) for x in epi(1, t)]: a(x)
        self.bar()
        self.stamp(4)
        for v in range(2):
            for t in range(4): a(f"ds_write_b128 v{HW}, {vr(HT + 4*(v*4+t))} offset:{v*4096 + t*1024}")
        endpair()
        hr = [x for k in (0, 2, 4, 6, 1, 3, 5, 7) for x in hrd(k)]
        for r in hr[:10]: a(r)
        f = sp({}, hr[10:], 0); sp(f, [x for k in (0, 2, 4, 6) for x in w2rd(8, k)], 22)
        f.setdefault(31, []).append(self.bar)
        self.run(mm2(0, 0) + mm2(0, 1), f)
        self.stamp(5)

        def store(tau, p):
            def g():
                a(f"buffer_store_dwordx4 {vr(PK(tau)+4*p)}, v{PA}, s[{SW}:{SW+3}], s{sP+tau} offen offset:{1024*p} {FL[self.opt['sf']]}")
                self.tag(f"S{tau}")
            return g
        def cvts(tau):
            s = AC2[tau % 2]
            return [f"v_cvt_pk_bf16_f32 v{PK(tau)+i}, v{s+2*i}, v{s+2*i+1}" for i in range(8)]
        def flag(tau):
            def g():
                self.wv([f"S{tau}"])
                a(f"buffer_atomic_or v{FB+tau}, v{FA}, s[{SW}:{SW+3}], s{sF+tau} offen sc1")
                if tau in (0, 5): self.stamp(7 if tau == 0 else 8)
            return g
        g0 = 32*(self.opt["sfirst"] - 9) + 16
        f = {}; ms = []; late = []
        for tau in range(1, 7):
            pair = 7 + tau; b = 32*(tau-1)
            if tau == 1: sp(f, [x for k in (1, 3, 5, 7) for x in w2rd(pair, k)], b)
            else: sp(f, w2rd(pair, 7), b)
            sp(f, cvts(tau-1), b+2, 1 if tau == 1 else 2)
            if tau < 6:
                if tau < self.opt["lastb"] - 7: f.setdefault(b+15, []).append(endpair)
                sp(f, [x for k in (0, 2, 4, 6) for x in w2rd(pair+1, k)], b+16)
                sp(f, [x for k in (1, 3, 5) for x in w2rd(pair+1, k)], b+24)
            ms += mm2(tau, 0) + mm2(tau, 1)
        for t in range(6):
            g = max(g0 + 4*t, 32*t + (10 if t == 0 else 6))
            f.setdefault(g, []).append(store(t, 0)); f.setdefault(g+2, []).append(store(t, 1))
            g += self.opt["lag"]
            if g < 190: f.setdefault(g, []).append(flag(t))
            else: late.append(flag(t))
        sp(f, [f"s_lshl_b32 s64, s{sWV}, 12", f"s_add_u32 s64, s64, {OWN}", f"v_add_u32 v3, s64, v{HA}"], 172)
        self.run(ms, f, look=8)
        self.stamp(6)
        a("s_nop 4")
        for t in range(4):
            a(f"ds_write_b128 v3, {vr(AC2[0]+4*t)} offset:{t*1024}")
        for g in late: g()
        a("s_waitcnt lgkmcnt(0)")
        self.bar()
        self.stamp_out(9)
        a("s_endpgm")

    def helper(self, part):
        a = self.a
        A1, A2, AX = 112, 116, 126
        TW = 128
        sU, sM0, sOff, sXo, sMX = 50, 51, 59, 60, 61
        sPp, sHh, sMir, sGA, sGB, sNext, sG = 36, 37, 38, 39, 4, 5, 6
        def dma(stage, i):
            def g():
                pair, half = stage // 2, stage % 2
                if i == 0:
                    a(f"s_add_u32 m0, s{sM0}, {slot(pair) + half*16384}")
                    if pair < 7:
                        if half == 0: a(f"s_mul_i32 s{sOff}, s{sXo}, {64*3584//128}")
                        else: a(f"s_add_u32 s{sOff}, s{sOff}, {32*3584}")
                    else:
                        a(f"s_add_u32 s{sOff}, s{52 + (pair-6) % 7}, {half*128*896}")
                if pair < 7: a(f"buffer_load_dwordx4 v{A1+i}, s[{SA}:{SA+3}], s{sOff} offen offset:{1024*i} {['', 'nt', 'sc1'][self.opt['wf']]} lds")
                else: a(f"buffer_load_dwordx4 v{A2+i}, s[{SB}:{SB+3}], s{sOff} offen offset:{1024*i} lds")
                self.tag(f"D{stage}")
            return g
        def xdma(p, h):
            def g():
                a(f"s_add_u32 m0, s{sMX}, {XIMG + p*8192 + h*4096}")
                if h == 0 and p > 0:
                    a(f"s_add_u32 s{sXo}, s{sXo}, 128"); a(f"s_cmp_eq_u32 s{sXo}, 896"); a(f"s_cselect_b32 s{sXo}, 0, s{sXo}")
                else: a("s_nop 0")
                a(f"buffer_load_dwordx4 v{AX+h}, s[{SX}:{SX+3}], s{sXo} offen {['', 'nt', 'sc1'][self.opt['xf']]} lds")
            return g
        def dmas(*stages):
            l = []
            for s in stages:
                if 1 < s < 14: l.append(xdma(s // 2, s % 2))
                l += [dma(s, i) for i in range(4)]
            return l
        if part == 0:
            self.tr.reset()
            a(f"s_sub_u32 s{sU}, s{sWV}, 4")
            a("v_bfe_u32 v5, v0, 3, 5")
            a(f"v_lshl_add_u32 v7, v5, 6, s{sR}")
            a("v_mul_u32_u24 v7, 896, v7")
            a("v_lshrrev_b32 v8, 3, v2")
            a("v_xor_b32 v8, v8, v6")
            a(f"v_lshl_add_u32 v{AX}, v8, 4, v7")
            a(f"v_add_u32 v{AX+1}, {32*896}, v{AX}")
            a("v_lshrrev_b32 v3, 4, v2")
            a("v_lshlrev_b32 v3, 1, v3")
            a("v_xor_b32 v3, v3, v6")
            a("v_lshlrev_b32 v13, 4, v3")
            a("v_bfe_u32 v4, v2, 3, 2")
            a("v_lshrrev_b32 v8, 5, v2")
            a("v_lshl_add_u32 v4, v8, 3, v4")
            a("v_mul_u32_u24 v4, 3584, v4")
            a(f"s_lshl_b32 s62, s{sJ}, 9"); a(f"s_lshl_b32 s63, s{sU}, 7"); a("s_add_u32 s62, s62, s63")
            a(f"v_add3_u32 v{A1}, v13, v4, s62")
            for i in range(1, 4):
                a(f"v_add_u32 v{A1+i}, {(16*(i&1) + 4*(i>>1))*3584 - 1024*i}, v{A1}")
            a(f"s_lshl_b32 s{sM0}, s{sU}, 12")
            a(f"s_lshl_b32 s{sMX}, s{sU}, 10")
            a(f"s_lshl_b32 s{sXo}, s{sK}, 7")
            a(f"s_mov_b32 s{SA+2}, {448*1792*2}")
            a(f"s_mov_b32 s{SA+3}, 0x00020000")
            a("s_waitcnt lgkmcnt(0)")
            a(f"s_mov_b32 s{SX}, s4")
            a(f"s_and_b32 s{SX+1}, s5, 0xffff")
            a(f"s_mov_b32 s{SA}, s40")
            a(f"s_and_b32 s{SA+1}, s41, 0xffff")
            for d in [xdma(0, 0), xdma(0, 1)] + dmas(0, 1): d()
            a("s_branch L_helper2")
            self.helper_vm = [set(e) for e in self.tr.vm]
            return
        a.label("L_helper2")
        self.tr.lds, self.tr.vm = [], self.helper_vm
        def mix(ds, work, per):
            work = list(work)
            for d in ds:
                d()
                for _ in range(per):
                    if work: self.emit(work.pop(0))
            for w in work: self.emit(w)

        b = Asm()
        self.tile_order(b)
        b("v_mov_b32 v12, 0xffff0000")
        b("v_lshrrev_b32 v4, 3, v2")
        b(f"s_lshl_b32 s62, s{sJ}, 8"); b(f"s_lshl_b32 s63, s{sU}, 5"); b("s_add_u32 s62, s62, s63")
        b("v_add_u32 v4, s62, v4")
        b("v_mul_u32_u24 v4, 896, v4")
        b(f"v_add_u32 v{A2}, v13, v4")
        for i in range(1, 4):
            b(f"v_add_u32 v{A2+i}, {8*896*i - 1024*i}, v{A2}")
        srd(b, SB, 42, 448*1792*2)
        self.ws_srd(b)
        srd(b, SO, 44, 2048*896)
        b(f"s_and_b32 s{sPp}, s{sU}, 1"); b(f"s_lshr_b32 s{sHh}, s{sU}, 1")
        b(f"s_lshl_b32 s64, s{sPp}, 12"); b(f"s_add_u32 s64, s64, {OUTT}"); b(f"s_lshl_b32 s65, s{sHh}, 2")
        b("v_lshrrev_b32 v3, 5, v2"); b("v_add_u32 v3, s65, v3"); b("v_xor_b32 v3, v3, v6")
        b("v_lshlrev_b32 v3, 4, v3"); b("v_bfe_u32 v4, v2, 4, 1"); b("v_lshl_add_u32 v3, v4, 3, v3")
        b("v_and_b32 v4, 15, v2"); b("v_lshl_add_u32 v3, v4, 7, v3")
        b("v_xor_b32 v4, 32, v3"); b("v_add_u32 v109, s64, v3"); b("v_add_u32 v110, s64, v4")
        b(f"s_add_u32 s64, s{sC}, 7"); b(f"s_sub_u32 s64, s64, s{sK}"); b("s_sub_u32 s65, s64, 7")
        b.lines.append("s_cmp_ge_u32 s64, 7\ns_cselect_b32 s64, s65, s64"); b("s_lshl_b32 s64, s64, 13")
        b(f"s_sub_u32 s64, s64, {OUTT - XIMG}")
        b("v_add_u32 v98, s64, v109"); b("v_add_u32 v99, s64, v110")
        b("s_mov_b32 s66, 0"); b(f"s_lshl_b32 s68, s{sR}, 2")
        early = len(b.lines)
        b(f"s_lshl_b32 s62, s{sC}, 1"); b(f"s_add_u32 s62, s62, s{sHh}")
        b(f"s_lshl_b32 s63, s{sPp}, 5"); b(f"s_add_u32 s63, s63, s{sR}")
        b("s_sub_u32 s64, 13, s62"); b("s_sub_u32 s65, 14, s62")
        b.lines.append("s_cmp_eq_u32 s65, 7\ns_cselect_b32 s65, 0, s65")
        b("s_sub_u32 s66, 64, s63"); b("s_and_b32 s66, s66, 63")
        b.lines.append(f"s_cmp_ge_u32 s62, 7\ns_cselect_b32 s{sMir}, 1, 0\ns_cselect_b32 s64, s64, s62\ns_cselect_b32 s65, s65, s62\n"
                       "s_cselect_b32 s66, s66, s63\ns_cselect_b32 s67, -1.0, 1.0")
        b("s_mul_i32 s66, s66, 7")
        b(f"s_add_u32 s{sGA}, s66, s64"); b(f"s_add_u32 s{sGB}, s66, s65")
        b(f"s_lshl_b32 s{sGA}, s{sGA}, 12"); b(f"s_lshl_b32 s{sGB}, s{sGB}, {7 if self.opt['c0'] else 12}")
        b(f"s_add_u32 s{sGA}, s{sGA}, {GBASE}"); b(f"s_add_u32 s{sGB}, s{sGB}, {C0BASE if self.opt['c0'] else GBASE}")
        b.lines.append(f"s_cmp_eq_u32 s{sMir}, 1\ns_cselect_b32 s{sGB}, s{sGB}, {OOB}")
        b("v_and_b32 v123, 15, v2"); b("v_lshlrev_b32 v123, 4, v123"); b(f"s_lshl_b32 s7, s{sPp}, 3"); b("v_add_u32 v123, s7, v123")
        MS, GO = self.opt["ms"], self.opt["go"]
        b(f"s_mul_i32 s7, s{sR}, {7*MS}"); b(f"s_add_u32 s7, s7, {MBOX}")
        b(f"s_mul_i32 s40, s{sC}, {MS}"); b("s_add_u32 s40, s40, s7"); b(f"s_add_u32 s7, s7, {GO}")
        b(f"s_mul_i32 s41, s64, {MS}"); b("s_add_u32 s41, s41, s7"); b(f"s_mul_i32 s42, s65, {MS}"); b("s_add_u32 s42, s42, s7")
        b(f"s_lshl_b32 s43, s{sR}, 8"); b(f"s_add_u32 s43, s43, {STATS}")
        b("v_lshlrev_b32 v103, 4, v2")
        b(f"s_mul_i32 s64, s{sR}, {self.PR}"); b(f"s_mul_i32 s65, s{sC}, {self.PC}"); b("s_add_u32 s64, s64, s65")
        b(f"s_lshl_b32 s65, s{sHh}, 12"); b("s_add_u32 s64, s64, s65")
        b(f"s_lshl_b32 s65, s{sPp}, 10"); b("s_add_u32 s64, s64, s65"); b(f"s_add_u32 s64, s64, {PBASE}")
        b("v_add_u32 v102, s64, v103")
        b("v_and_b32 v3, 3, v2"); b("v_cmp_eq_u32 vcc, 0, v3")
        b.lines.append(f"s_cmp_eq_u32 s62, 0\ns_cselect_b32 s64, 1, s{sMir}"); b("s_mul_i32 s64, s64, 0xffff")
        b("v_mov_b32 v3, s64"); b("v_lshrrev_b32 v105, 2, v2"); b(f"v_lshlrev_b32 v105, {1 if self.opt['c0'] else 6}, v105")
        b("v_cndmask_b32 v104, 0, v3, vcc")
        for rt in range(2):
            b("v_and_b32 v3, 15, v2")
            b(f"v_lshl_add_u32 v3, v3, 6, s63")
            if rt: b("v_add_u32 v3, 1024, v3")
            b("v_lshrrev_b32 v4, 4, v2"); b("v_lshlrev_b32 v4, 3, v4")
            b("v_mul_u32_u24 v4, v4, v3")
            b("v_cvt_f32_u32 v3, v3"); b("v_cvt_f32_u32 v4, v4")
            b(f"v_mul_f32 v3, {f32(1/2048)}, v3"); b(f"v_mul_f32 v4, {f32(1/2048)}, v4")
            b("v_mul_f32 v3, s67, v3"); b("v_mul_f32 v4, s67, v4")
            for q in range(8):
                b(f"v_fract_f32 v8, v4")
                b(f"v_cos_f32 v{16+q}, v8")
                b(f"v_sin_f32 v{24+q}, v8")
                b("v_add_f32 v4, v4, v3")
            for i in range(4):
                b(f"v_cvt_pk_bf16_f32 v{TW+4*rt+i}, v{16+2*i}, v{17+2*i}")
                b(f"v_cvt_pk_bf16_f32 v{TW+8+4*rt+i}, v{24+2*i}, v{25+2*i}")
        b(f"s_lshl_b32 s64, s{sU}, 12"); b(f"s_add_u32 s64, s64, {GST}")
        b("v_add_u32 v106, s64, v103")
        b("v_lshrrev_b32 v3, 4, v2"); b("v_bfe_u32 v4, v2, 2, 2"); b("v_lshl_add_u32 v3, v3, 3, v4")
        b("v_and_b32 v4, 3, v2"); b("v_lshlrev_b32 v4, 3, v4"); b("v_lshl_add_u32 v3, v3, 7, v4")
        b("v_add_u32 v107, s64, v3")
        b(f"s_lshl_b32 s64, s{sHh}, 13"); b(f"s_lshl_b32 s65, s{sPp}, 11"); b("s_add_u32 s64, s64, s65")
        b(f"s_add_u32 s64, s64, {OWN}"); b("v_add_u32 v108, s64, v103")
        b(f"s_lshl_b32 s64, s{sPp}, 12"); b(f"s_add_u32 s64, s64, {OUTT}"); b(f"s_lshl_b32 s65, s{sHh}, 2")
        b("v_and_b32 v3, 3, v2"); b("v_add_u32 v3, s65, v3"); b("v_bfe_u32 v4, v2, 2, 3"); b("v_xor_b32 v4, v3, v4")
        b("v_lshrrev_b32 v8, 2, v2"); b("v_lshlrev_b32 v4, 4, v4"); b("v_lshl_add_u32 v4, v8, 7, v4")
        b("v_add_u32 v111, s64, v4")
        b("v_lshl_add_u32 v8, v8, 6, s63"); b("v_mul_u32_u24 v8, 896, v8"); b("v_lshl_add_u32 v8, v3, 4, v8")
        b(f"s_lshl_b32 s64, s{sC}, 7"); b("v_add_u32 v120, s64, v8")
        b("v_xor_b32 v121, 48, v2"); b("v_add_u32 v122, 16, v121"); b("v_and_b32 v122, 63, v122")
        b("v_lshlrev_b32 v121, 2, v121"); b("v_lshlrev_b32 v122, 2, v122")
        b("s_mov_b32 s62, 0x00003f80"); b("s_mov_b32 s63, 0x3f800000")
        b(f"s_lshl_b32 s64, s{sHh}, 1"); b("s_lshl_b32 s64, 3, s64")
        b(f"s_mov_b32 s{sNext}, 0"); b(f"s_mov_b32 s{sG}, 0")
        XR, XU = 192, 200
        for i in range(8):
            b(f"v_lshlrev_b32 v{XU+2*i}, 16, v{XR+i}")
            b(f"v_and_b32 v{XU+2*i+1}, v12, v{XR+i}")
        setup = b.lines
        def work(n):
            nonlocal setup
            w = setup[:n]; setup = setup[n:]
            return w
        mix(dmas(2), [], 0)
        self.stamp(1)
        mix([], work(early), 0)
        self.wv(["D0"]); self.bar()
        self.stamp(2)
        mix(dmas(3), [], 0)
        if "trace" in self.abl:
            a("v_mov_b32 v4, 1"); a("v_lshlrev_b32 v3, 12, v0"); a("v_subrev_u32 v3, 0x100000, v3")
            srd(a, SD, 46, 256)
            a(f"buffer_atomic_add v4, v3, s[{SD}:{SD+3}], s68 offen sc1")
        else:
            a(f"s_cmp_lg_u32 s{sU}, 0")
            a("s_cbranch_scc1 L_noready")
            a("s_mov_b32 s69, 1")
            a("s_atomic_add s69, s[46:47], s68")
            a.label("L_noready")
        self.wv(["D1"]); self.bar()
        mix(dmas(4, 5), [], 0)
        self.wv(["D3"]); self.bar()

        for p in range(1, 6):
            mix(dmas(2*p+4, 2*p+5), [], 0)
            self.wv([f"D{2*p+3}"]); self.bar()
        o = self.opt
        for ct in range(2):
            for rt in range(2):
                a(f"ds_read_b64 {vr(XR+(ct*2+rt)*2, 2)}, v{98+ct} offset:{rt*2048}")
        nxt = [16]
        def issue(n, limit):
            st = list(range(nxt[0], min(nxt[0] + n, limit))); nxt[0] += len(st)
            mix(dmas(*st), [], 0)
        issue(2, 18)
        self.wv(["D15"], True); self.bar()
        issue(o["e9"], 22)
        a("s_load_dword s69, s[46:47], s68")
        mix([], work(o["wx"]), 0)
        a("s_waitcnt vmcnt(0)"); self.bar()
        mix([], work(o["wd"]), 0)
        issue(o["nw"], 22)
        self.bar()
        issue(o["nh"], 24)
        a.label("L_rdy")
        a("s_waitcnt lgkmcnt(0)")
        a("s_cmp_ge_u32 s69, 7")
        a("s_cbranch_scc1 L_rdy_ok")
        a("s_load_dword s69, s[46:47], s68 glc")
        a("s_add_u32 s66, s66, 1")
        a(f"s_cmp_lt_u32 s66, {SPIN}")
        a("s_cbranch_scc1 L_rdy")
        a.label("L_rdy_ok")
        self.bar()
        issue(o["n8"], 26)
        self.wv(["D19"]); self.bar()
        issue(o["n9"], 28)
        self.wv(["D21"]); self.bar()
        issue(9, 28)
        self.stamp(3)
        if o["lastb"] == 12:
            mix([], work(40), 0)
            self.wv(["D23"]); self.bar()
            mix([], work(60), 0)
        self.wv(["D27"]); self.bar()
        mix([], work(300), 0)
        PD, SUM, GD, GP, GF, Y, Y2, OW = 144, 16, 32, 48, 52, 68, 84, 216
        cnt = [0]
        def poll():
            a("s_load_dword s52, s[48:49], s40 glc")
        def wait_flag(tau):
            n = cnt[0]; cnt[0] += 1
            a(f"s_lshl_b32 s56, s64, {4*tau}")
            a("s_andn2_b32 s65, s56, s55")
            a(f"s_cbranch_scc0 L_wf{n}_ok")
            a.label(f"L_wf{n}")
            a.lines.append("    s_waitcnt lgkmcnt(0)")
            a("s_or_b32 s55, s55, s52")
            a("s_andn2_b32 s65, s56, s55")
            a(f"s_cbranch_scc0 L_wf{n}_ok")
            poll()
            a("s_add_u32 s66, s66, 1")
            a(f"s_cmp_lt_u32 s66, {SPIN}")
            a(f"s_cbranch_scc1 L_wf{n}")
            a.label(f"L_wf{n}_ok")
        def load_p(tau):
            wait_flag(tau)
            a(f"s_mov_b32 s65, {tau*self.PT}")
            for ct in range(2):
                a(f"buffer_load_dwordx4 {vr(PD+8*tau+4*ct)}, v102, s[{SW}:{SW+3}], s65 offen offset:{ct*2048} {FL[o['lf']]}")
            if tau in (0, 5): self.stamp(7 if tau == 0 else 8)
        added = [False]
        def add_p(tau):
            self.wv([f"v{PD+8*tau+4}"])
            if tau == 5: self.stamp(9)
            for rt in range(2):
                for ct in range(2):
                    for i in range(2):
                        for h in range(2):
                            d = SUM + (ct*2+rt)*4 + 2*i + h
                            a(f"v_dot2_f32_bf16 v{d}, v{PD+8*tau+4*ct+2*rt+i}, s{62+h}, {f'v{d}' if added[0] else '0'}")
            added[0] = True
        def own():
            self.bar()
            d = OW if added[0] else SUM
            for ct in range(2):
                for rt in range(2):
                    a(f"ds_read_b128 {vr(d+(ct*2+rt)*4)}, v108 offset:{ct*4096 + rt*1024}")
            a("s_waitcnt lgkmcnt(0)")
            if added[0]:
                for i in range(16): a(f"v_add_f32 v{SUM+i}, v{SUM+i}, v{OW+i}")
            added[0] = True
        def load_g(k=None):
            if k is not None: a(f"s_mul_i32 s56, s64, {hex(0x111111 & ((1 << (4*k+4)) - 1))}")
            a.label("L_gw")
            for i in range(3): a(f"s_load_dword s{52+i}, s[48:49], s{40+i} glc")
            a("s_add_u32 s66, s66, 1")
            a("s_waitcnt lgkmcnt(0)")
            a("s_or_b32 s55, s55, s52")
            a(f"s_cmp_ge_u32 s66, {SPIN}")
            a("s_cbranch_scc1 L_gg")
            a("s_lshr_b32 s65, s52, 19")
            a("s_and_b32 s65, s65, s53"); a("s_and_b32 s65, s65, s54")
            a("s_bitcmp1_b32 s65, 5")
            if "nog" not in self.abl: a("s_cbranch_scc0 L_gw")
            if k is not None:
                a.label("L_gw2")
                a("s_andn2_b32 s65, s56, s55")
                a("s_cbranch_scc0 L_gg")
                poll()
                a("s_add_u32 s66, s66, 1")
                a("s_waitcnt lgkmcnt(0)")
                a("s_or_b32 s55, s55, s52")
                a(f"s_cmp_lt_u32 s66, {SPIN}")
                a("s_cbranch_scc1 L_gw2")
            a.label("L_gg")
            for i in range(4):
                a(f"buffer_load_dwordx4 {vr(GD+4*i)}, v103, s[{SW}:{SW+3}], s{sGA} offen offset:{1024*i} {FL[o['gf']]}")
            for i in range(4):
                a(f"buffer_load_ushort v{GP+i}, v105, s[{SW}:{SW+3}], s{sGB} offen offset:{(32 if self.opt['c0'] else 1024)*i} {FL[o['gf']]}")
            a(f"buffer_load_dwordx2 v[124:125], v123, s[{SW}:{SW+3}], s43 offen {FL[o['gf']]}")
            self.stamp(4)
        def proc_g():
            self.wv(["v124"])
            self.stamp(5)
            for i in range(4):
                a(f"v_bfi_b32 v{GD+4*i}, v104, v{GP+i}, v{GD+4*i}")
                a(f"ds_write_b128 v106, {vr(GD+4*i)} offset:{1024*i}")
            for part in range(2):
                for ct in range(2):
                    for h in range(2):
                        a(f"ds_read_b64_tr_b16 {vr(GF+(ct*2+part)*4+2*h, 2)}, v107 offset:{h*512 + part*64 + ct*32}")
            self.run([mfma(Y+(ct*2+rt)*4, GF+(ct*2+part)*4, TW+8*part+4*rt, "0" if part == 0 else None)
                      for part in range(2) for ct in range(2) for rt in range(2)], {})
            for i in range(4): a(f"v_mul_f32 v{112+i}, {f32(-1.4426950408889634)}, v{124+i//2}")
            a("v_mov_b32 v116, 1.0"); a("v_mov_b32 v117, 1.0")
            a(f"s_cmp_eq_u32 s{sMir}, 0")
            a("s_cbranch_scc1 L_nomir")
            a("s_nop 4")
            for ct in range(2):
                for rt in range(2):
                    a(f"ds_bpermute_b32 v{Y2+(ct*2+rt)*4}, v122, v{Y+(ct*2+rt)*4}")
                    for e in range(1, 4):
                        a(f"ds_bpermute_b32 v{Y2+(ct*2+rt)*4+e}, v121, v{Y+((1-ct)*2+rt)*4+4-e}")
            a("s_mov_b64 vcc, 0xffff")
            a("s_waitcnt lgkmcnt(0)")
            for ct in range(2):
                for rt in range(2):
                    a(f"v_cndmask_b32 v{Y+(ct*2+rt)*4}, v{Y2+((1-ct)*2+rt)*4}, v{Y2+(ct*2+rt)*4}, vcc")
                    for e in range(1, 4):
                        a(f"v_mov_b32 v{Y+(ct*2+rt)*4+e}, v{Y2+(ct*2+rt)*4+e}")
            a.label("L_nomir")
            a("s_nop 4")
            for ct in range(2):
                for rt in range(2):
                    for e in range(4):
                        i = Y + (ct*2+rt)*4 + e
                        a(f"v_mul_f32 v{i}, v{i}, v{124+rt}")
            self.stamp(6)
        a("s_mov_b32 s55, 0"); a("s_mov_b32 s52, 0")
        for it in SCRIPTS[o["gs"]].split():
            if it == "F": own()
            elif it == "P": poll()
            elif it == "LG": load_g()
            elif it == "PG": proc_g()
            else: {"W": wait_flag, "L": load_p, "A": add_p, "G": load_g}[it[0]](int(it[1]))
        T = 52
        a(f"s_mov_b32 s65, {16*64*896}")
        for rt in range(2):
            idx = [(ct*2+rt)*4 + e for ct in range(2) for e in range(4)]
            for i in idx[::2]: a(f"v_pk_mul_f32 {vr(T+i,2)}, {vr(SUM+i,2)}, {vr(112+2*rt,2)}")
            for i in idx: a(f"v_exp_f32 v{T+i}, v{T+i}")
            for i in idx[::2]: a(f"v_pk_mul_f32 {vr(Y+i,2)}, {vr(Y+i,2)}, {vr(SUM+i,2)}")
            for i in idx[::2]: a(f"v_pk_add_f32 {vr(T+i,2)}, {vr(T+i,2)}, v[116:117]")
            for i in idx: a(f"v_rcp_f32 v{T+i}, v{T+i}")
            if rt == 1:
                self.wl([f"v{GD}"])
                a(f"buffer_store_dwordx4 {vr(GD)}, v120, s[{SO}:{SO+3}], 0 offen {['', 'sc1', 'nt', 'sc0 sc1'][o['of']]}")
            for i in idx[::2]: a(f"v_pk_fma_f32 {vr(Y+i,2)}, {vr(Y+i,2)}, {vr(T+i,2)}, {vr(XU+i,2)}")
            for ct in range(2):
                n = ct*2 + rt
                for i in range(2): a(f"v_cvt_pk_bf16_f32 v{XR+2*n+i}, v{Y+4*n+2*i}, v{Y+4*n+2*i+1}")
                a(f"ds_write_b64 v{109+ct}, {vr(XR+2*n, 2)} offset:{rt*2048}")
            a(f"ds_read_b128 {vr(GD+4*rt)}, v111 offset:{rt*2048}")
        a("s_waitcnt lgkmcnt(0)")
        a(f"buffer_store_dwordx4 {vr(GD+4)}, v120, s[{SO}:{SO+3}], s65 offen {['', 'sc1', 'nt', 'sc0 sc1'][o['of']]}")
        self.stamp(10)
        self.stamp_out(11)
        a("s_endpgm")

    def dft_head(self):
        a = self.a
        a.label("L_dft")
        self.tr.reset()
        a("v_lshrrev_b32 v5, 3, v0")
        a(f"v_lshl_add_u32 v7, v5, 5, s{sR}")
        a("v_mul_u32_u24 v7, 896, v7")
        a("v_lshl_add_u32 v7, v6, 4, v7")
        a("v_lshrrev_b32 v8, 2, v6")
        a("v_lshl_or_b32 v8, v8, 30, v7")
        a("s_waitcnt lgkmcnt(0)")
        a(f"s_mov_b32 s{SX}, s4")
        a(f"s_and_b32 s{SX+1}, s5, 0xffff")
        for k in range(4):
            for h in range(2):
                a(f"buffer_load_dwordx4 {vr(16+8*k+4*h)}, v{8 if k == 3 else 7}, s[{SX}:{SX+3}], 0 offen offset:{128*k + 448*h}")
        a("s_branch L_dft2")
        self.dft_after_x = [set(e) for e in self.tr.vm]

    def dft(self):
        a = self.a; sp = self.spread
        DXR, DU = 16, 48
        AF, BF, AC, Z, TW = [16, 32], 128, 48, 128, 112
        XA, TA, RS = 248, 250, 254
        sBase = 50
        MS, GO = self.opt["ms"], self.opt["go"]
        a.label("L_dft2")
        self.tr.lds, self.tr.vm = [], self.dft_after_x
        self.ws_srd(a)
        srd(a, SD, 46, 256)
        a("v_mov_b32 v12, 0xffff0000")
        a("v_mov_b32 v244, 0"); a("v_mov_b32 v245, 0"); a("v_mov_b32 v15, 0")
        a("v_bfe_u32 v3, v5, 1, 4"); a("v_and_b32 v4, 1, v5"); a("v_lshl_add_u32 v3, v3, 1, v4")
        a("v_lshrrev_b32 v4, 5, v5"); a("v_lshl_add_u32 v3, v3, 1, v4"); a("v_lshlrev_b32 v3, 2, v3")
        a(f"v_add_u32 v{RS}, {RSL}, v3")
        self.ximg_waddr()
        a("s_mov_b32 s54, 0x0f0f0f0f"); a("s_mov_b32 s55, 0x0f0f0f0f")
        a(f"s_cmp_eq_u32 s{sWV}, 7")
        a("s_cbranch_scc1 L_dft_w7")
        saved7 = [set(e) for e in self.tr.vm]
        a("s_add_u32 s6, s6, L_tab-L_pc"); a("s_addc_u32 s7, s7, 0")
        a(f"s_mul_i32 s52, s{sWV}, 28672"); a("s_add_u32 s52, s52, 8192")
        a(f"v_lshl_add_u32 v{TA}, v2, 4, s52")
        for i in range(1, 4): a(f"v_add_u32 v{TA+i}, {8192*i}, v{TA}")
        a(f"s_lshl_b32 s{sBase}, s{sWV}, 13"); a(f"s_add_u32 s{sBase}, s{sBase}, {DW}")
        self.ximg_raddr(XA, XA+1, DX)
        bl = [f"global_load_dwordx4 {vr(BF+4*n)}, v{TA+n//8}, s[6:7] offset:{1024*(n%8) - 4096}" for n in range(28)]
        def ln(loads):
            for k in range(4):
                self.wv([f"v{DXR+8*k+4}"])
                for i in range(4):
                    x1 = DXR + 8*k + i; x2 = x1 + 4; u = DU + 16*k + 4*i
                    a(f"v_dot2_f32_bf16 v15, v{x1}, v{x1}, v15")
                    a(f"v_lshlrev_b32 v240, 16, v{x1}")
                    a(f"v_and_b32 v241, v12, v{x1}")
                    a(f"v_dot2_f32_bf16 v15, v{x2}, v{x2}, v15")
                    a(f"v_lshlrev_b32 v242, 16, v{x2}")
                    a(f"v_and_b32 v243, v12, v{x2}")
                    a(f"v_pk_add_f32 {vr(u,2)}, v[240:241], v[242:243]")
                    a(f"v_sub_f32 v{u+2}, v240, v242"); a(f"v_sub_f32 v{u+3}, v241, v243")
                    a(f"v_pk_add_f32 v[244:245], v[244:245], {vr(u,2)}")
                    if loads and i % 2 == 1 and k >= self.opt["dk"]: a(loads.pop(0))
            self.stamp(1)
            a("v_add_f32 v14, v244, v245")
            a("s_nop 1")
            for x in self.ln_stats([(13, 14, 15)]): a(x)
            a("v_add_f32 v13, v13, v13")
            a("v_mov_b32 v15, v14")
            a("v_mul_f32 v240, v13, v14"); a("v_mul_f32 v241, v13, v14")
            a(f"ds_write_b32 v{RS}, v14")
            for par in range(2):
                for k in range(4):
                    for i in range(4):
                        u = DU + 16*k + 4*i + 2*par
                        if par == 0: a(f"v_pk_fma_f32 {vr(u,2)}, {vr(u,2)}, v[14:15], v[240:241]")
                        else: a(f"v_pk_mul_f32 {vr(u,2)}, {vr(u,2)}, v[14:15]")
                        a(f"v_cvt_pk_bf16_f32 v{DXR+8*k+4*par+i}, v{u}, v{u+1}")
                    if k == 3: a("s_mov_b64 exec, s[54:55]")
                    a(f"ds_write_b128 v9, {vr(DXR+8*k+4*par)} offset:{k*8192 + par*28672}")
                    if k == 3: a("s_mov_b64 exec, -1")
                    if loads: a(loads.pop(0))
            a("s_waitcnt lgkmcnt(0)")
            self.bar()
        ln(bl)
        self.stamp(2)
        if self.opt["prio"]:
            a(f"s_cmp_ge_u32 s{sWV}, 4"); a("s_cbranch_scc1 L_dft_lo"); a("s_setprio 2"); a.label("L_dft_lo")
        def rds(n):
            par, k = n // 7, n % 7
            return [f"ds_read_b128 {vr(AF[n%2]+4*t)}, v{XA+(k%2)} offset:{par*28672 + (k//2)*8192 + t*1024}" for t in range(4)]
        def mms(n):
            par, k = n // 7, n % 7
            return [mfma(AC + 32*par + 16*im + 4*t, AF[n%2]+4*t, BF+8*n+4*im, "0" if k == 0 else None) for im in range(2) for t in range(4)]
        def zepi(tile):
            s = AC + 16*tile; o = Z + 8*tile; l = []
            for t in range(2):
                for e in range(0, 4, 2):
                    x = s + 4*t + e; y = x + 8
                    l.append(f"v_add_f32 v3, v{x}, v{y}\nv_add_f32 v4, v{x+1}, v{y+1}")
                    l.append(f"v_sub_f32 v10, v{x}, v{y}\nv_sub_f32 v13, v{x+1}, v{y+1}")
                    l.append(f"v_cvt_pk_bf16_f32 v{o+2*t+e//2}, v3, v4")
                    l.append(f"v_cvt_pk_bf16_f32 v{o+4+2*t+e//2}, v10, v13")
            return l
        addr = Asm()
        addr("v_and_b32 v5, 7, v2"); addr("v_xor_b32 v5, v5, v11"); addr("v_lshlrev_b32 v5, 4, v5")
        addr("v_lshl_add_u32 v5, v8, 7, v5"); addr("v_xor_b32 v6, 64, v5")
        addr(f"v_add_u32 v9, s{sBase}, v5"); addr(f"v_add_u32 v7, s{sBase}, v6")
        addr("v_lshrrev_b32 v5, 3, v2"); addr("v_and_b32 v6, 7, v2"); addr("v_xor_b32 v14, v5, v6")
        addr("v_lshlrev_b32 v14, 4, v14"); addr("v_lshl_add_u32 v14, v5, 7, v14"); addr(f"v_add_u32 v14, s{sBase}, v14")
        addr("v_mul_u32_u24 v15, 57344, v5"); addr("v_lshl_add_u32 v15, v6, 4, v15")
        addr(f"s_lshl_b32 s56, s{sWV}, 12"); addr(f"s_lshl_b32 s57, s{sR}, 7"); addr("s_add_u32 s56, s56, s57")
        addr(f"s_add_u32 s56, s56, {GBASE}")
        addr("v_add_u32 v15, s56, v15")
        addr("v_lshlrev_b32 v242, 4, v6"); addr("v_lshl_add_u32 v242, v2, 7, v242"); addr(f"v_add_u32 v242, s{sBase}, v242")
        addr("v_xor_b32 v243, 64, v242")
        addr("v_and_b32 v5, 31, v2"); addr("v_lshrrev_b32 v6, 5, v2"); addr("v_lshl_add_u32 v5, v5, 1, v6")
        addr(f"s_lshl_b32 s56, s{sWV}, 7"); addr(f"s_lshl2_add_u32 s56, s{sR}, s56"); addr(f"s_add_u32 s58, s56, {C0BASE}")
        addr("v_mul_u32_u24 v244, 896, v5")
        addr("v_lshlrev_b32 v5, 2, v2")
        addr("v_mov_b32 v240, 0x80008000"); addr("v_mov_b32 v241, 0x80000000")
        for x in rds(0): a(x)
        a("v_lshlrev_b32 v246, 4, v2")
        bl += [f"global_load_dwordx4 {vr(TW+4*i)}, v246, s[6:7] offset:{1024*i}" for i in range(4)]
        for _ in range(2): a(bl.pop(0))
        ms = []; f = {}
        for n in range(14):
            ms += mms(n)
            if n < 13:
                sp(f, rds(n+1), 8*n)
                f.setdefault(8*n+7, []).append(lambda n=n: self.wv([f"v{BF+8*n+12}"]))
            for g in (4, 5, 6):
                if bl: f.setdefault(8*n+g, []).append(bl.pop(0))
        assert not bl
        sp(f, addr.lines, 20)
        sp(f, zepi(0) + zepi(1), 62)
        f.setdefault(100, []).append(f"buffer_load_dword v6, v5, s[{SD}:{SD+3}], 0 offen sc1")
        self.wv([f"v{BF+4}"])
        self.run(ms, f, look=4)
        self.stamp(3)
        NB, TX, GA, GP, GR = 16, 32, 160, 48, 80
        self.wv([f"v{TW+12}"])
        for i in range(16):
            a(f"v_xor_b32 v{TX+i}, v241, v{TW+i}")
        for x in zepi(2) + zepi(3): a(x)
        for eo in range(2):
            for i in range(8):
                a(f"v_xor_b32 v{NB+8*eo+i}, v240, v{Z+16*eo+8+i}")
        def s1(T):
            par = T >> 1; tw = (TX if T & 1 else TW) + 8*par; g = GA + 16*T; l1 = []; l2 = []
            for eo in range(2):
                za = Z + 16*eo + 4*par; zb = za + 8; nb = NB + 8*eo + 4*par
                l1.append(mfma(g + 4*eo, za, tw, "0")); l2.append(mfma(g + 4*eo, nb, tw+4))
                l1.append(mfma(g + 8 + 4*eo, zb, tw, "0")); l2.append(mfma(g + 8 + 4*eo, za, tw+4))
            return l1 + l2
        def s1epi(T):
            g = GA + 16*T; o = GP + 8*T; l = []
            for part in range(2):
                for e in range(4):
                    l.append(f"v_cvt_pk_bf16_f32 v{o+4*part+e}, v{g+8*part+e}, v{g+8*part+4+e}")
                l.append(f"ds_write_b128 v{7 if part else 9}, {vr(o+4*part)} offset:{T*2048}")
            for n in (2*T, 2*T+1):
                l.append(f"ds_read_b128 {vr(GR+4*n)}, v14 offset:{n*1024}")
            return l
        def gstore(n):
            def g():
                T = n >> 1
                a(f"s_mov_b32 s56, {(16*(n&1) + 32*(T&1) + (T>>1))*28672}")
                self.wl([f"v{GR+4*n}"])
                a(f"buffer_store_dwordx4 {vr(GR+4*n)}, v15, s[{SW}:{SW+3}], s56 offen sc1")
            return g
        f = sp({}, s1epi(0), 15, 2); sp(f, s1epi(1), 22, 2); sp(f, [gstore(0), gstore(1)], 30)
        self.run(s1(0) + s1(1) + s1(2) + s1(3), f)
        c0 = ["ds_read_u16 v10, v242", "ds_read_u16 v13, v243"]
        for x in s1epi(2) + [gstore(2), gstore(3)] + s1epi(3) + c0 + [gstore(n) for n in range(4, 8)]: self.emit(x)
        a("s_waitcnt lgkmcnt(0)")
        a("v_lshl_or_b32 v10, v13, 16, v10")
        if self.opt["c0"]: a(f"buffer_store_dword v10, v244, s[{SW}:{SW+3}], s58 offen sc1")
        self.stamp(4)
        a(f"s_mul_i32 s56, s{sWV}, {MS}"); a(f"s_add_u32 s56, s56, {MBOX + GO}")
        a(f"v_mul_u32_u24 v3, {7*MS}, v2"); a("v_add_u32 v3, s56, v3")
        a("v_mov_b32 v4, 1")
        a("s_mov_b32 s54, 0")
        a.label("L_drdy")
        a("s_waitcnt vmcnt(0)")
        a("v_cmp_le_u32 vcc, 7, v6")
        a("s_add_u32 s54, s54, 1")
        a(f"s_cmp_ge_u32 s54, {SPIN}")
        a("s_cbranch_scc1 L_dgo")
        a("s_cmp_eq_u32 vcc_lo, -1")
        a("s_cbranch_scc1 L_dgo")
        a(f"buffer_load_dword v6, v5, s[{SD}:{SD+3}], 0 offen sc1")
        a("s_branch L_drdy")
        a.label("L_dgo")
        self.tr.reset()
        a("s_mov_b32 exec_hi, 0")
        a(f"buffer_atomic_add v4, v3, s[{SW}:{SW+3}], 0 offen sc1")
        a("s_mov_b64 exec, -1")
        self.stamp(5)
        a("s_branch L_dft_end")
        a.label("L_dft_w7")
        self.tr.lds, self.tr.vm = [], saved7
        ln([])
        a("v_lshlrev_b32 v5, 2, v2")
        a(f"v_add_u32 v3, {RSL}, v5")
        a("ds_read_b32 v4, v3")
        a(f"s_lshl_b32 s56, s{sR}, 8"); a(f"s_add_u32 s56, s56, {STATS}")
        a(f"s_lshl_b32 s57, s{sR}, 2"); a(f"s_mul_i32 s58, s{sR}, {7*MS}"); a(f"s_add_u32 s58, s58, {MBOX}")
        a("s_waitcnt lgkmcnt(0)")
        a(f"buffer_store_dword v4, v5, s[{SW}:{SW+3}], s56 offen sc1")
        a(f"v_mul_u32_u24 v3, {MS}, v2"); a("v_mov_b32 v6, 0x1000000")
        a("s_mov_b32 s54, 0")
        a("s_waitcnt vmcnt(0)")
        a.label("L_w7rdy")
        a("s_load_dword s55, s[46:47], s57 glc")
        a("s_add_u32 s54, s54, 1")
        a("s_waitcnt lgkmcnt(0)")
        a(f"s_cmp_ge_u32 s54, {SPIN}")
        a("s_cbranch_scc1 L_w7go")
        a("s_cmp_ge_u32 s55, 7")
        a("s_cbranch_scc0 L_w7rdy")
        a.label("L_w7go")
        a("s_mov_b64 exec, 0x7f")
        a(f"buffer_atomic_or v6, v3, s[{SW}:{SW+3}], s58 offen sc1")
        a("s_mov_b64 exec, -1")
        a.label("L_dft_end")
        self.stamp_out(6)
        a.label("L_end")
        a("s_endpgm")

    def table(self):
        a = self.a
        def row(v): a.raw(".quad " + ",".join("0x%x" % (v[4*i] | v[4*i+1] << 16 | v[4*i+2] << 32 | v[4*i+3] << 48) for i in range(len(v)//4)))
        a.raw(".p2align 8")
        a.raw(".type L_tab,@object")
        a.label("L_tab")
        for par in range(2):
            for fn in (math.cos, math.sin):
                for lane in range(64):
                    t0 = 2*(lane & 15) + par; g = lane >> 4
                    row([bf16(fn(-2*math.pi*(((16*(q >> 2) + 4*g + (q & 3))*t0) % 64)/64)) for q in range(8)])
        tab = {fn: [bf16(round(fn(-2*math.pi*m/448), 15)) for m in range(448)] for fn in (math.cos, math.sin)}
        for w in range(7):
            for par in range(2):
                for k in range(7):
                    for fn in (math.cos, math.sin):
                        for l0 in range(0, 64, 8):
                            v = []
                            for lane in range(l0, l0 + 8):
                                e = 32*w + 2*(lane & 15) + par or 224
                                v += [tab[fn][(e*(32*k + 8*(lane >> 4) + q)) % 448] for q in range(8)]
                            row(v)
        a.raw(f".size L_tab, {4096 + 7*28672}")

    def build(self):
        a = self.a
        K = NAME + "_kernel"
        kernel_begin(a, K)
        self.prologue()
        self.helper(0)
        self.dft_head()
        a.raw(".p2align 3")
        a.label("L_compute")
        self.compute()
        self.helper(1)
        self.dft()
        self.table()
        hdr = open("cdna_kernels/" + NAME + ".s.ref").read().split("; Override launch")[0]
        return hdr + file_text([f"grid=(256,1,1) block=(512,1,1) lds={LDS_BYTES}"], a.text(), [descriptor(K, 256, 102, 256)])

if __name__ == "__main__":
    import argparse, subprocess
    ap = argparse.ArgumentParser()
    ap.add_argument("-o", default="k.s"); ap.add_argument("--mapping", default="4")
    ap.add_argument("--abl", default=""); ap.add_argument("--stamps", action="store_true"); ap.add_argument("--opt", default="")
    r = ap.parse_args()
    opt = {k: int(v) for k, v in (x.split("=") for x in r.opt.split(",") if x)}
    g = Gen(r.mapping, r.stamps, [x for x in r.abl.split(',') if x], opt)
    t = g.build()
    open(r.o, "w").write(t)
    rc = subprocess.run(["clang", "-x", "assembler", "-target", "amdgcn-amd-amdhsa", "-mcpu=gfx950", "-c", r.o, "-o", r.o + ".o"], capture_output=True, text=True)
    for e in g.tr.errors[:20]: print("WAIT:", e)
    print(r.o, "hazards:", hazcheck.check(t), "waits:", len(g.tr.errors), "asm:", "ok" if rc.returncode == 0 else rc.stderr[:2000])
```

```python
import sys, re
from asmlib import *
B0 = 64 << 20
def bench(kind):
    a = Asm()
    kernel_begin(a, "bench_kernel")
    a("s_cmp_ge_u32 s2, 256"); a("s_cbranch_scc1 B_end")
    a("s_load_dwordx2 s[6:7], s[0:1], 80"); a("s_load_dwordx2 s[4:5], s[0:1], 8")
    a("v_lshrrev_b32 v1, 6, v0"); a("s_nop 0"); a("v_readfirstlane_b32 s33, v1")
    a("v_and_b32 v2, 63, v0"); a("v_lshlrev_b32 v6, 4, v2")
    a("s_waitcnt lgkmcnt(0)")
    srd(a, 20, 6, 128 << 20); srd(a, 8, 4, 8 << 20)
    a("s_lshl_b32 s34, s2, 15"); a("s_lshl_b32 s35, s33, 13"); a("s_add_u32 s34, s34, s35")
    a(f"s_add_u32 s36, s34, {B0 + (1 << 20)}")
    if kind.startswith("rs"):
        a(f"s_lshr_b32 s34, s2, {kind[2]}"); a("s_lshl_b32 s34, s34, 15"); a("s_add_u32 s34, s34, s35")
    if kind == "rr":
        a("s_xor_b32 s37, s34, 32768")
        for i in range(8):
            a(f"buffer_load_dwordx4 v[{24+4*i}:{27+4*i}], v6, s[8:11], s37 offen"); a("s_add_u32 s37, s37, 1024")
        a("s_waitcnt vmcnt(0)")
        for i in range(60): a("s_nop 15")
    n = 1 if kind == "r1" else 8
    a("s_memrealtime s[40:41]")
    for i in range(n):
        if kind[0] == "w": a("buffer_store_dwordx4 v[24:27], v6, s[20:23], s36 offen sc1")
        elif kind in ("ri", "rr", "r1") or kind.startswith("rs"): a(f"buffer_load_dwordx4 v[{24+4*i}:{27+4*i}], v6, s[8:11], s34 offen")
        elif kind == "rw": a(f"buffer_load_dwordx4 v[{24+4*i}:{27+4*i}], v6, s[20:23], s36 offen")
        a("s_add_u32 s34, s34, 1024"); a("s_add_u32 s36, s36, 1024")
    a("s_waitcnt vmcnt(0)")
    a("s_memrealtime s[42:43]")
    if kind.startswith("wr"):
        a(f"s_add_u32 s36, s36, {32768*int(kind[2:] or 1) - 8192}")
        for i in range(40): a("s_nop 15")
        for i in range(8):
            a(f"buffer_load_dwordx4 v[{24+4*i}:{27+4*i}], v6, s[20:23], s36 offen sc1"); a("s_add_u32 s36, s36, 1024")
    a("s_waitcnt vmcnt(0) lgkmcnt(0)")
    a("s_sub_u32 s42, s42, s40")
    if kind == "x":
        a("s_getreg_b32 s42, hwreg(HW_REG_XCC_ID)"); a("s_sub_u32 s42, s42, s2"); a("s_and_b32 s42, s42, 7"); a("s_mul_i32 s42, s42, 20")
    a("v_mov_b32 v8, s42")
    a("s_lshl_b32 s34, s2, 2"); a("s_add_u32 s34, s34, s33"); a("s_lshl_b32 s34, s34, 2"); a(f"s_add_u32 s34, s34, {B0}")
    a("s_mov_b64 exec, 1")
    a("buffer_store_dword v8, off, s[20:23], s34")
    a.label("B_end"); a("s_endpgm")
    return a.text()
def probe(K):
    a = Asm()
    kernel_begin(a, "probe_kernel")
    a("s_cmp_ge_u32 s2, 1"); a("s_cbranch_scc1 P_end")
    a("s_load_dwordx2 s[6:7], s[0:1], 80"); a("s_waitcnt lgkmcnt(0)")
    srd(a, 20, 6, 128 << 20)
    a(f"s_mov_b32 s8, {B0}"); a("v_lshlrev_b32 v1, 4, v0")
    for i in range(4): a(f"buffer_load_dwordx4 v[{4+4*i}:{7+4*i}], v1, s[20:23], s8 offen offset:{1024*i}")
    a("s_waitcnt vmcnt(0)")
    for i in range(5, 20): a(f"v_add_u32 v4, v4, v{i}")
    a("s_mov_b32 s14, 0")
    for l in range(64): a(f"v_readlane_b32 s12, v4, {l}"); a("s_nop 1"); a("s_add_u32 s14, s14, s12")
    a(f"s_mul_i32 s14, s14, {K}"); a("s_lshr_b32 s14, s14, 10"); a("s_min_u32 s14, s14, 50000")
    a("s_memrealtime s[16:17]"); a("s_waitcnt lgkmcnt(0)")
    a.label("P_spin")
    a("s_memrealtime s[18:19]"); a("s_waitcnt lgkmcnt(0)")
    a("s_sub_u32 s15, s18, s16"); a("s_cmp_lt_u32 s15, s14"); a("s_cbranch_scc1 P_spin")
    a.label("P_end"); a("s_endpgm")
    return a.text()
src = open(sys.argv[1]).read()
Kn = NAME + "_kernel"
names = []
for spec in sys.argv[2:]:
    kind, K = spec.split(",")
    m = re.search(r"; @launch (.*)\n", src)
    t = src.replace(m.group(0), f"; @launch kernel=bench_kernel grid=(256,1,1) block=(256,1,1) lds=100000\n; @launch kernel={Kn} {m.group(1)}\n; @launch kernel=probe_kernel grid=(1,1,1) block=(64,1,1) lds=0\n")
    t = t.replace('.section .rodata,"a"\n', bench(kind) + probe(int(K)) + '.section .rodata,"a"\n')
    t += ".p2align 6\n" + descriptor("probe_kernel", 24, 32, 24) + ".p2align 6\n" + descriptor("bench_kernel", 64, 64, 64)
    n = f"p2_{kind}_{K}.s"; open(n, "w").write(t); names.append(n)
print(", ".join(f'"work/{n}"' for n in names))
```
